```python
import torch

def _softmax(x, axis=-1):
    return torch.softmax(x, dim=axis)
def _gelu(x):
    return torch.nn.functional.gelu(x, approximate="tanh")
def _silu(x):
    return torch.nn.functional.silu(x)
def _sigmoid(x):
    return torch.sigmoid(x)
def _layernorm(x, axis=-1, eps=1e-5):
    m = x.mean(dim=axis, keepdim=True)
    v = x.var(dim=axis, keepdim=True, unbiased=False)
    return (x - m) / torch.sqrt(v + eps)
def _scatter_add(tgt, idx, src, axis=0):
    return tgt.clone().index_add_(axis, idx, src)
def _segment_sum(src, seg, n):
    out = torch.zeros((n,) + src.shape[1:], dtype=src.dtype)
    return out.index_add_(0, seg, src)
def _pad(x, pw):
    flat = tuple(v for pair in reversed(pw) for v in pair)
    return torch.nn.functional.pad(x, flat)

kernel_name = 'concat_heads__gqa_block_cached__gqa_block_cached__near_ridge'

def setup_inputs():

    _w = (lambda a: (lambda t: t.to(torch.bfloat16) if t.is_floating_point() else t)(torch.as_tensor(a)))
    def _A_setup():
        B, Sq, D = 32, 32, 512
        Hq, Hkv, Sk, Dh = 32, 8, 512, 128
        assert Hq % Hkv == 0, (Hq, Hkv)
        return {
            "x": _w((lambda *s: torch.randn(*s, dtype=torch.bfloat16) * 0.8)(B, Sq, D)),
            "k_cache": _w((lambda *s: torch.randn(*s, dtype=torch.bfloat16) * 0.8)(B, Hkv, Sk, Dh)),
            "v_cache": _w((lambda *s: torch.randn(*s, dtype=torch.bfloat16) * 0.05)(B, Hkv, Sk, Dh)),
            "wq": _w((lambda *s: torch.randn(*s, dtype=torch.bfloat16) * 0.8)(D, Hq * Dh) * (D ** -0.5)),
            "wo": _w((lambda *s: torch.randn(*s, dtype=torch.bfloat16) * 0.05)(Hq * Dh, D) * ((Hq * Dh) ** -0.5)),
        }
    _A_in = _A_setup()

    def _B_setup():
        B, Sq, D = 32, 32, 512
        Hq, Hkv, Sk, Dh = 32, 8, 512, 128
        assert Hq % Hkv == 0, (Hq, Hkv)
        return {
            "x": _w((lambda *s: torch.randn(*s, dtype=torch.bfloat16) * 0.8)(B, Sq, D)),
            "k_cache": _w((lambda *s: torch.randn(*s, dtype=torch.bfloat16) * 0.8)(B, Hkv, Sk, Dh)),
            "v_cache": _w((lambda *s: torch.randn(*s, dtype=torch.bfloat16) * 0.05)(B, Hkv, Sk, Dh)),
            "wq": _w((lambda *s: torch.randn(*s, dtype=torch.bfloat16) * 0.8)(D, Hq * Dh) * (D ** -0.5)),
            "wo": _w((lambda *s: torch.randn(*s, dtype=torch.bfloat16) * 0.05)(Hq * Dh, D) * ((Hq * Dh) ** -0.5)),
        }
    _B_in = _B_setup()

    return {
        "A_x": _A_in["x"],
        "A_k_cache": _A_in["k_cache"],
        "A_v_cache": _A_in["v_cache"],
        "A_wq": _A_in["wq"],
        "A_wo": _A_in["wo"],
        "B_x": _B_in["x"],
        "B_k_cache": _B_in["k_cache"],
        "B_v_cache": _B_in["v_cache"],
        "B_wq": _B_in["wq"],
        "B_wo": _B_in["wo"],
    }

def reference(A_x, A_k_cache, A_v_cache, A_wq, A_wo, B_x, B_k_cache, B_v_cache, B_wq, B_wo):
    def _A_ref(x, k_cache, v_cache, wq, wo):
        B, Sq, D = x.shape
        Hq, Dh = 32, 128
        Hkv = k_cache.shape[1]
        rep = Hq // Hkv
        q = (lambda x, *d: x.permute(*d))((x @ wq).reshape(B, Sq, Hq, Dh), 0, 2, 1, 3)
        k = (lambda x, n, axis: torch.repeat_interleave(x, n, dim=axis))(k_cache, rep, axis=1)
        v = (lambda x, n, axis: torch.repeat_interleave(x, n, dim=axis))(v_cache, rep, axis=1)
        scores = torch.einsum("bhqd,bhkd->bhqk", q, k) * (Dh ** -0.5)
        p = _softmax(scores, axis=-1)
        o = torch.einsum("bhqk,bhkd->bhqd", p, v)
        return (lambda x, *d: x.permute(*d))(o, 0, 2, 1, 3).reshape(B, Sq, Hq * Dh) @ wo

    def _B_ref(x, k_cache, v_cache, wq, wo):
        B, Sq, D = x.shape
        Hq, Dh = 32, 128
        Hkv = k_cache.shape[1]
        rep = Hq // Hkv
        q = (lambda x, *d: x.permute(*d))((x @ wq).reshape(B, Sq, Hq, Dh), 0, 2, 1, 3)
        k = (lambda x, n, axis: torch.repeat_interleave(x, n, dim=axis))(k_cache, rep, axis=1)
        v = (lambda x, n, axis: torch.repeat_interleave(x, n, dim=axis))(v_cache, rep, axis=1)
        scores = torch.einsum("bhqd,bhkd->bhqk", q, k) * (Dh ** -0.5)
        p = _softmax(scores, axis=-1)
        o = torch.einsum("bhqk,bhkd->bhqd", p, v)
        return (lambda x, *d: x.permute(*d))(o, 0, 2, 1, 3).reshape(B, Sq, Hq * Dh) @ wo

    a = _A_ref(A_x, A_k_cache, A_v_cache, A_wq, A_wo)
    b = _B_ref(B_x, B_k_cache, B_v_cache, B_wq, B_wo)
    return torch.concatenate([a, b], axis=-1)
```

```python
import re

REG = re.compile(r'^(-|\|)?([vsa])(\d+)\|?$')
RNG = re.compile(r'^(-)?([vsa])\[(\d+):(\d+)\]$')

def regs_of(tok):
    tok = tok.strip()
    m = REG.match(tok)
    if m: return [(m.group(2), int(m.group(3)))]
    m = RNG.match(tok)
    if m: return [(m.group(2), i) for i in range(int(m.group(3)), int(m.group(4)) + 1)]
    if tok == 'vcc': return [('s', 106), ('s', 107)]
    if tok == 'm0': return [('s', 124)]
    if tok == 'exec': return [('s', 126), ('s', 127)]
    return []

TRANS = ('v_exp_', 'v_log_', 'v_rcp_', 'v_rsq_', 'v_sqrt_', 'v_sin_', 'v_cos_')

class Ins:
    __slots__ = ('text', 'op', 'kind', 'wr', 'rd', 'states', 'passes', 'srcc', 'srcab', 'wide', 'dma', 'D')
    def __init__(self, text):
        self.text = text
        t = text.split(';')[0].strip()
        parts = t.split(None, 1)
        op = parts[0]; self.op = op
        rest = parts[1] if len(parts) > 1 else ''
        ops = [o.strip() for o in rest.split(',')] if rest else []
        mods = []
        if ops:
            sp = ops[-1].split()
            ops[-1] = sp[0] if sp else ''
            mods = sp[1:]
        R = [regs_of(o) for o in ops]
        flat = lambda L: set(x for r in L for x in r)
        self.states = 1; self.passes = 0; self.srcc = set(); self.srcab = set(); self.wide = False; self.dma = False; self.D = None
        if op.startswith('v_mfma'):
            self.kind = 'mfma'; self.wr = set(R[0]); self.rd = flat(R[1:]); self.srcc = set(R[3]); self.srcab = flat(R[1:3])
            self.passes = 8 if '32x32' in op else 4; self.D = tuple(R[0])
        elif op.startswith('v_permlane') and 'swap' in op:
            self.kind = 'valu'; self.wr = flat(R); self.rd = flat(R)
        elif op.startswith('v_'):
            self.kind = 'valu'; self.wr = set(R[0]) if R else set(); self.rd = flat(R[1:])
            if op.startswith(('v_dot2c', 'v_fmac', 'v_mac')): self.rd |= self.wr
            if op.startswith('v_cndmask') and len(ops) == 3: self.rd |= set(regs_of('vcc'))
        elif op.startswith('ds_read'):
            self.kind = 'ds'; self.wr = set(R[0]); self.rd = flat(R[1:])
        elif op.startswith('ds_'):
            self.kind = 'ds'; self.wr = set(); self.rd = flat(R)
        elif op.startswith('buffer_load'):
            self.kind = 'vmem'
            if 'lds' in mods:
                self.wr = set(); self.rd = flat(R) | set(regs_of('m0')); self.dma = True
            else:
                self.wr = set(R[0]); self.rd = flat(R[1:])
        elif op.startswith('buffer_atomic'):
            self.kind = 'vmem'; self.rd = flat(R); self.wr = set(R[0]) if 'sc0' in mods else set()
        elif op.startswith('buffer_'):
            self.kind = 'vmem'; self.wr = set(); self.rd = flat(R)
            if 'x4' in op or 'x3' in op: self.wide = True; self.D = tuple(R[0])
        elif op.startswith(('s_load', 's_memrealtime', 's_memtime')):
            self.kind = 'smem'; self.wr = set(R[0]); self.rd = flat(R[1:])
        elif op == 's_nop':
            self.kind = 'nop'; self.wr = set(); self.rd = set(); self.states = int(ops[0]) + 1
        elif op.startswith(('s_cmp', 's_waitcnt', 's_barrier', 's_cbranch', 's_branch', 's_sleep', 's_setprio', 's_endpgm', 's_bitcmp')):
            self.kind = 'sctl'; self.wr = set(); self.rd = flat(R)
            if op.startswith('s_cbranch_vcc'): self.rd |= set(regs_of('vcc'))
        elif op.startswith('s_'):
            self.kind = 'salu'; self.wr = set(R[0]); self.rd = flat(R[1:])
            if 'saveexec' in op: self.wr |= set(regs_of('exec'))
        else:
            raise ValueError('unknown op ' + text)

def vonly(s): return set(x for x in s if x[0] in 'va')
def sonly(s): return set(x for x in s if x[0] == 's')

def need(J, I):
    n = 0
    if J.kind == 'valu':
        jv = vonly(J.wr); js = sonly(J.wr)
        if I.kind == 'mfma' and jv & I.rd: n = max(n, 3 if J.op.startswith('v_dot') else 2)
        if I.op.startswith('v_permlane') and jv & I.rd: n = max(n, 2)
        if I.op.startswith(('v_readfirstlane', 'v_readlane')) and jv & I.rd: n = max(n, 1)
        if J.op.startswith(TRANS) and I.kind in ('valu', 'ds', 'vmem') and jv & (I.rd | I.wr): n = max(n, 1)
        if J.op.startswith('v_dot'):
            if jv & (I.rd | I.wr):
                same_c = (I.op == J.op and I.wr == J.wr and not (jv & (I.rd - I.wr)))
                if not same_c: n = max(n, 3)
        if js:
            if I.kind == 'vmem' and js & I.rd: n = max(n, 5)
            if I.kind == 'valu' and js & I.rd: n = max(n, 2)
            if I.kind in ('salu', 'sctl') and js & I.rd: n = max(n, 1)
            if ('s', 126) in js and I.kind == 'mfma': n = max(n, 4)
    if J.kind == 'mfma':
        big = J.passes == 8
        if I.kind == 'mfma':
            if J.wr & I.srcab: n = max(n, 12 if big else 8)
            if J.wr & I.srcc:
                if not (J.wr == I.srcc and J.passes == I.passes): n = max(n, 10 if big else 6)
            elif J.wr & I.wr: n = max(n, 10 if big else 6)
        elif I.kind in ('valu', 'ds', 'vmem'):
            if J.wr & (I.rd | I.wr): n = max(n, 12 if big else 8)
            if J.srcc & I.wr: n = max(n, 7 if big else 3)
    if J.kind == 'salu' and ('s', 124) in J.wr and I.dma: n = max(n, 1)
    if J.kind == 'salu' and ('s', 126) in J.wr and I.kind in ('valu', 'mfma', 'ds', 'vmem'): n = max(n, 0)
    if J.kind == 'vmem' and J.wide and set(J.D) & I.wr: n = max(n, 2)
    if J.kind == 'ds' and not J.wr and '128' in J.op and vonly(J.rd) & I.wr and I.kind == 'valu': n = max(n, 2)
    return n

class Prog:
    def __init__(self):
        self.out = []
        self.hist = []
        self.vm = []
        self.lg = []
        self.sm = []
        self.bars = []
        self.nins = 0
        self.nops = 0
    def fork(self):
        p = Prog(); p.hist = list(self.hist); p.vm = [list(e) for e in self.vm]; p.lg = [list(e) for e in self.lg]
        p.sm = list(self.sm); p.bars = list(self.bars)
        return p
    def raw(self, text): self.out.append(text)
    def label(self, name): self.out.append(name + ':')
    def comment(self, c): self.out.append('; ' + c)
    def _push(self, I):
        d = 0; req = 0
        for J in reversed(self.hist[-24:]):
            r = need(J, I) - d
            if r > req: req = r
            d += J.states
            if d >= 20: break
        while req > 0:
            k = min(req, 16)
            N = Ins(f's_nop {k-1}'); self.hist.append(N); self.out.append(N.text); req -= k; self.nops += k
        self.hist.append(I); self.out.append(I.text); self.nins += 1
        if len(self.hist) > 64: self.hist = self.hist[-32:]
    def _wait(self, vm=None, lg=None):
        t = []
        if vm is not None and vm < len(self.vm):
            vm = min(vm, 63); t.append(f'vmcnt({vm})'); self.vm = self.vm[len(self.vm) - vm:] if vm else []
        if lg is not None and (lg < len(self.lg) or (lg == 0 and self.sm)):
            lg = min(lg, 15)
            if self.sm: lg = 0; self.sm = []
            t.append(f'lgkmcnt({lg})'); self.lg = self.lg[len(self.lg) - lg:] if lg else []
        if t: self._push(Ins('s_waitcnt ' + ' '.join(t)))
    def e(self, text, tag=None):
        I = Ins(text)
        touch = I.rd | I.wr
        vmw = None; lgw = None
        for i, en in enumerate(self.vm):
            if en[0] & touch: vmw = len(self.vm) - 1 - i
        for i, en in enumerate(self.lg):
            if en[0] & touch: lgw = len(self.lg) - 1 - i
        if any(r in touch for r in self.sm): lgw = 0
        self._wait(vmw, lgw)
        if I.kind == 'vmem' and len(self.vm) >= 63: self._wait(vm=62)
        self._push(I)
        if I.kind == 'vmem': self.vm.append([set(I.wr), tag])
        elif I.kind == 'ds': self.lg.append([set(I.wr), tag])
        elif I.kind == 'smem': self.sm += list(I.wr)
        return I
    def wait_tags(self, tags):
        w = None
        for i, en in enumerate(self.vm):
            if en[1] in tags: w = len(self.vm) - 1 - i
        self._wait(vm=w)
    def wait_vm(self, n=0): self._wait(vm=n)
    def wait_lg(self, n=0): self._wait(lg=n)
    def barrier(self, name):
        self._wait(lg=0)
        self.bars.append(name)
        self.e(f's_barrier ; {name}')
    def settle(self):
        self.e('s_nop 15')
    def text(self): return '\n'.join(self.out) + '\n'
```

```python
import sys, math, struct
from asmdsl import Prog
from common import *

NAME = "concat_heads__gqa_block_cached__gqa_block_cached__near_ridge"
KN = NAME + "_kernel"

def f2u(x): return struct.unpack('<I', struct.pack('<f', x))[0]

class Opt:
    stamps = False
    stagger = True
    thr = 2.0 ** 14

sX, sK, sV, sWQ, sWO, sWS, sOUT, sDBG = 8, 12, 16, 20, 24, 28, 32, 36
sWAVE, sG, sP, sBP, sROT, sSELLO, sSELHI, sSCALE, sTHR, sTILE, sW1K, sGRP = 40, 41, 42, 43, 44, 45, 46, 47, 48, 49, 50, 51
sT0, sT1, sT2, sT3, sT4, sT5 = 52, 53, 54, 55, 56, 57
sLO1, sHI1 = 58, 59
sST = 64
def srd(b): return f"s[{b}:{b+3}]"
def vr(a, n): return f"v[{a}:{a+n-1}]" if n > 1 else f"v{a}"

SLOT = 8192
RING = 5 * SLOT
def kslot(b, t): return b * RING + (t % 5) * SLOT
def vslot(b, t): return (2 + b) * RING + (t % 5) * SLOT
def xslot(c): return (c % 4) * RING + (3 + c // 4) * SLOT
def qslot(h): return h * RING + 4 * SLOT
OBUF = 0
EXBUF = 2 * RING

vO, vKV, vS, vNM, vQ = 0, 64, 96, 112, 128
vACC = 0
vRAW = [128, 160, 192]
vP, vTMP = 224, 232
vFR = 224
vBF = 236
vKA, vVA = 236, 244
vL, vDK, vDV, vTS = 248, 249, 250, 251
vWOFF, vBA0, vBA1, vLANE = 252, 253, 254, 255

def acc(c, qt): return vACC + (c * 4 + qt) * 4

def stamp(p, i):
    if Opt.stamps: p.e(f"s_memrealtime s[{sST+2*i}:{sST+2*i+1}]")

def prologue(p):
    e = p.e
    e("s_cmp_ge_u32 s2, 256")
    e("s_cbranch_scc1 L_end")
    e("s_load_dwordx16 s[64:79], s[0:1], 0")
    e("s_load_dwordx8 s[80:87], s[0:1], 64")
    e("s_load_dwordx2 s[88:89], s[0:1], 96")
    e("v_lshrrev_b32 v1, 6, v0")
    e(f"v_and_b32 v{vLANE}, 63, v0")
    e(f"v_readfirstlane_b32 s{sWAVE}, v1")
    e(f"s_and_b32 s{sG}, s2, 7")
    e(f"s_lshr_b32 s{sGRP}, s2, 3")
    e(f"s_and_b32 s{sP}, s{sGRP}, 1")
    e(f"s_lshr_b32 s{sBP}, s{sGRP}, 1")
    e(f"s_and_b32 s{sROT}, s{sBP}, 7")
    e(f"s_mov_b32 s{sSELLO}, 0x05040100")
    e(f"s_mov_b32 s{sSELHI}, 0x07060302")
    e(f"s_mov_b32 s{sSCALE}, 0x{f2u(128 ** -0.5 * math.log2(math.e)):08x}")
    e(f"s_mov_b32 s{sTHR}, 0x{f2u(Opt.thr):08x}")
    e(f"s_mov_b32 s{sLO1}, 0x00003f80")
    e(f"s_mov_b32 s{sHI1}, 0x3f800000")
    e(f"s_and_b32 s{sW1K}, s{sWAVE}, 3")
    e(f"s_lshl_b32 s{sW1K}, s{sW1K}, 10")
    e(f"s_cmp_eq_u32 s{sP}, 0")
    for d, a in ((sX, 64), (sK, 66), (sV, 68), (sWQ, 70), (sWO, 72)):
        e(f"s_cselect_b32 s{d}, s{a}, s{a+10}")
        e(f"s_cselect_b32 s{d+1}, s{a+1}, s{a+11}")
    e(f"s_lshl_b32 s{sT0}, s{sBP}, 16")
    e(f"s_add_u32 s{sX}, s{sX}, s{sT0}"); e(f"s_addc_u32 s{sX+1}, s{sX+1}, 0")
    e(f"s_mov_b32 s{sX+2}, 65536"); e(f"s_mov_b32 s{sX+3}, 0x00020000")
    e(f"s_lshl_b32 s{sT0}, s{sBP}, 21"); e(f"s_lshl_b32 s{sT1}, s{sG}, 17"); e(f"s_add_u32 s{sT0}, s{sT0}, s{sT1}")
    for d in (sK, sV):
        e(f"s_add_u32 s{d}, s{d}, s{sT0}"); e(f"s_addc_u32 s{d+1}, s{d+1}, 0")
        e(f"s_mov_b32 s{d+2}, {1048576 + 131072}"); e(f"s_mov_b32 s{d+3}, 0x00020000")
    e(f"s_lshl_b32 s{sT0}, s{sG}, 10")
    e(f"s_add_u32 s{sWQ}, s{sWQ}, s{sT0}"); e(f"s_addc_u32 s{sWQ+1}, s{sWQ+1}, 0")
    e(f"s_mov_b32 s{sWQ+2}, {4194304 - 7 * 1024}"); e(f"s_mov_b32 s{sWQ+3}, 0x00020000")
    e(f"s_lshl_b32 s{sT0}, s{sG}, 19")
    e(f"s_add_u32 s{sWO}, s{sWO}, s{sT0}"); e(f"s_addc_u32 s{sWO+1}, s{sWO+1}, 0")
    e(f"s_mov_b32 s{sWO+2}, 524288"); e(f"s_mov_b32 s{sWO+3}, 0x00020000")
    e(f"s_mov_b32 s{sOUT}, s84"); e(f"s_mov_b32 s{sOUT+1}, s85"); e(f"s_mov_b32 s{sOUT+2}, 2097152"); e(f"s_mov_b32 s{sOUT+3}, 0x00020000")
    e(f"s_mov_b32 s{sDBG}, s86"); e(f"s_mov_b32 s{sDBG+1}, s87"); e(f"s_mov_b32 s{sDBG+2}, 256"); e(f"s_mov_b32 s{sDBG+3}, 0x00020000")
    e(f"s_mov_b32 s{sWS}, s88"); e(f"s_mov_b32 s{sWS+1}, s89"); e(f"s_mov_b32 s{sWS+2}, 268435456"); e(f"s_mov_b32 s{sWS+3}, 0x00020000")
    stamp(p, 0)
    e("v_lshrrev_b32 v1, 3, v0")
    e("v_bfe_u32 v2, v0, 4, 3")
    e("v_and_b32 v3, 7, v0")
    e("v_xor_b32 v2, v2, v3")
    e("v_lshlrev_b32 v2, 4, v2")
    e("v_lshl_add_u32 v1, v1, 10, v2")
    e(f"s_lshl_b32 s{sT1}, s{sWAVE}, 10")
    for c in range(8):
        e(f"s_add_u32 s{sT0}, s{sROT}, {c}"); e(f"s_and_b32 s{sT0}, s{sT0}, 7"); e(f"s_lshl_b32 s{sT0}, s{sT0}, 7")
        e(f"s_add_u32 m0, s{sT1}, {xslot(c)}")
        e(f"buffer_load_dwordx4 v1, {srd(sX)}, s{sT0} offen lds", tag=('x', c))

def dma_addr_setup(p):
    e = p.e
    t0, t1, t2 = vTMP, vTMP + 1, vTMP + 2
    e(f"v_lshrrev_b32 v{t0}, 4, v{vLANE}")
    e(f"s_lshr_b32 s{sT0}, s{sW1K}, 8")
    e(f"v_add_u32 v{t1}, s{sT0}, v{t0}")
    e(f"v_and_b32 v{t2}, 15, v{vLANE}")
    e(f"v_xor_b32 v{vDK}, v{t2}, v{t1}")
    e(f"v_lshlrev_b32 v{vDK}, 4, v{vDK}")
    e(f"v_lshl_add_u32 v{vDK}, v{t1}, 8, v{vDK}")
    e(f"v_lshlrev_b32 v{t0}, 2, v{t0}")
    e(f"v_xor_b32 v{vDV}, v{t2}, v{t0}")
    e(f"v_lshlrev_b32 v{vDV}, 4, v{vDV}")
    e(f"v_lshl_add_u32 v{vDV}, v{t1}, 8, v{vDV}")

def dma_tile(p, kind, b, t, halves):
    base = kslot(b, t) if kind == 'K' else vslot(b, t)
    for hf in halves:
        p.e(f"s_mov_b32 s{sT0}, {b * 1048576 + t * 8192 + hf * 4096}")
        p.e(f"s_add_u32 m0, s{sW1K}, {base + hf * 4096}")
        p.e(f"buffer_load_dwordx4 v{vDK if kind == 'K' else vDV}, {srd(sK if kind == 'K' else sV)}, s{sT0} offen nt lds", tag=(kind, b, t))

def wq_load(p, s, buf):
    e = p.e
    e(f"s_lshl_b32 s{sT1}, s{sROT}, 1"); e(f"s_add_u32 s{sT1}, s{sT1}, {s}"); e(f"s_and_b32 s{sT1}, s{sT1}, 15"); e(f"s_lshl_b32 s{sT1}, s{sT1}, 18")
    for j in range(8):
        e(f"buffer_load_dwordx4 {vr(buf + 4 * j, 4)}, v{vWOFF}, {srd(sWQ)}, s{sT1} offen")
        if j < 7: e(f"s_add_u32 s{sT1}, s{sT1}, 8192")

def wo_load(p, s, buf):
    e = p.e
    e(f"s_add_u32 s{sT1}, s{sROT}, {s}"); e(f"s_and_b32 s{sT1}, s{sT1}, 7"); e(f"s_lshl_b32 s{sT1}, s{sT1}, 15")
    for j in range(8):
        if j == 4: e(f"s_add_u32 s{sT1}, s{sT1}, 8192")
        e(f"buffer_load_dwordx4 {vr(buf + 4 * j, 4)}, v{vWOFF}, {srd(sWO)}, s{sT1} offen offset:{(j % 4) * 1024}")

def perm_frag(p, raw, c, fr):
    for m in range(4):
        p.e(f"v_perm_b32 v{fr + m}, v{raw + 4 * (2 * m + 1) + c // 2}, v{raw + 4 * (2 * m) + c // 2}, s{sSELHI if c % 2 else sSELLO}")

def proj(p, nks, bufs, load, bread, mid=None):
    fi = 0
    perm_frag(p, bufs[0], 0, vFR)
    for s in range(nks):
        raw = bufs[s % 3]
        for c in range(8):
            fr = vFR + 4 * (fi % 3); fi += 1
            nfr = vFR + 4 * (fi % 3)
            for qt in range(4):
                cin = "0" if s == 0 else vr(acc(c, qt), 4)
                p.e(f"v_mfma_f32_16x16x32_bf16 {vr(acc(c, qt), 4)}, {vr(fr, 4)}, {vr(vBF + 4 * qt, 4)}, {cin}")
                if c == 7 and s + 1 < nks: bread(s + 1, qt)
                if qt == 0:
                    if c < 7: perm_frag(p, raw, c + 1, nfr)
                    elif s + 1 < nks: perm_frag(p, bufs[(s + 1) % 3], 0, nfr)
                if c == 7 and qt == 0 and s + 3 < nks: load(p, s + 3, raw)
        if mid: mid(s)

def phase1_P(p):
    e = p.e
    e(f"v_lshrrev_b32 v1, 4, v{vLANE}")
    e(f"v_and_b32 v2, 15, v{vLANE}")
    e(f"v_lshlrev_b32 v3, 4, v2")
    e(f"v_lshl_add_u32 v{vWOFF}, v1, 16, v3")
    e(f"s_lshr_b32 s{sT0}, s{sW1K}, 2")
    e(f"v_add_u32 v{vWOFF}, s{sT0}, v{vWOFF}")
    for s in range(3): wq_load(p, s, vRAW[s])
    e(f"v_lshrrev_b32 v3, 1, v2")
    e(f"v_xor_b32 v3, v3, v1")
    e(f"v_lshlrev_b32 v3, 4, v3")
    e(f"v_lshl_add_u32 v{vBA0}, v2, 7, v3")
    e(f"v_xor_b32 v{vBA1}, 64, v{vBA0}")
    cur = [0, 0]
    def bread(s, qt):
        c, half = s // 2, s % 2
        reg = vBA1 if half else vBA0
        want = xslot(c)
        if not (0 <= want - cur[half] and want - cur[half] + 3 * 2048 <= 65535):
            d = want - cur[half]
            e(f"v_add_u32 v{reg}, {d & 0xffffffff}, v{reg}"); cur[half] = want
        e(f"ds_read_b128 {vr(vBF + 4 * qt, 4)}, v{reg} offset:{want - cur[half] + qt * 2048}")
    p.wait_tags([('x', c) for c in range(8)])
    p.barrier('x')
    stamp(p, 1)
    for qt in range(4): bread(0, qt)
    def mid(s):
        if s == 8: p.barrier('mid')
        if s == 14: p.barrier('q0')
    proj(p, 16, vRAW, wq_load, bread, mid)
    stamp(p, 2)
    e(f"v_lshlrev_b32 v{vBA0}, 4, v{vLANE}")
    e(f"s_mul_i32 s{sT0}, s{sWAVE}, {RING}")
    e(f"v_add_u32 v{vBA0}, s{sT0}, v{vBA0}")
    for b, dst in ((1, 160), (0, vQ)):
        for j in range(4):
            for ql in range(2):
                qt = 2 * b + ql
                for c in range(8): e(f"v_mul_f32 v{acc(c, qt) + j}, s{sSCALE}, v{acc(c, qt) + j}")
                for w in range(4):
                    e(f"v_cvt_pk_bf16_f32 v{dst + (4 * ql + j) * 4 + w}, v{acc(2 * w, qt) + j}, v{acc(2 * w + 1, qt) + j}")
        for j in range(4):
            for w in range(4):
                e(f"v_permlane16_swap_b32 v{dst + j * 4 + w}, v{dst + (4 + j) * 4 + w}")
        if b == 1:
            for s in range(8): e(f"ds_write_b128 v{vBA0}, {vr(dst + 4 * s, 4)} offset:{4 * SLOT + s * 1024}")
            p.barrier('q1')
    dma_addr_setup(p)

def phase1_L(p):
    e = p.e
    dma_addr_setup(p)
    def grp(t):
        for kind in 'KV':
            for b in range(2): dma_tile(p, kind, b, t, (0, 1))
    grp(0)
    p.wait_tags([('x', c) for c in range(8)])
    p.barrier('x')
    stamp(p, 1)
    grp(1); grp(2)
    p.barrier('mid')
    grp(3)
    p.barrier('q0')
    stamp(p, 2)
    e(f"v_lshlrev_b32 v{vBA0}, 4, v{vLANE}")
    e(f"s_sub_u32 s{sT0}, s{sWAVE}, 4")
    e(f"s_mul_i32 s{sT0}, s{sT0}, {RING}")
    e(f"v_add_u32 v{vBA0}, s{sT0}, v{vBA0}")
    p.wait_tags([('K', 0, 0), ('K', 1, 0)])
    p.barrier('q1')
    for s in range(8): e(f"ds_read_b128 {vr(vQ + 4 * s, 4)}, v{vBA0} offset:{4 * SLOT + s * 1024}")

def att_setup(p, b):
    e = p.e
    t0, t1, t2 = vTMP, vTMP + 1, vTMP + 2
    e(f"v_and_b32 v{t0}, 31, v{vLANE}")
    e(f"v_lshrrev_b32 v{t1}, 5, v{vLANE}")
    e(f"v_lshlrev_b32 v{t1}, 3, v{t1}")
    e(f"v_and_b32 v{t2}, 15, v{vLANE}")
    e(f"v_xor_b32 v{t1}, v{t1}, v{t2}")
    e(f"v_lshlrev_b32 v{t1}, 4, v{t1}")
    e(f"v_lshl_add_u32 v{t1}, v{t0}, 8, v{t1}")
    e(f"v_add_u32 v{vKA}, {b * RING}, v{t1}")
    for s in range(1, 8): e(f"v_xor_b32 v{vKA + s}, {16 * s}, v{vKA}")
    e(f"v_bfe_u32 v{t0}, v{vLANE}, 2, 2")
    e(f"v_lshrrev_b32 v{t1}, 5, v{vLANE}")
    e(f"v_lshl_add_u32 v{t1}, v{t1}, 2, v{t0}")
    e(f"v_lshlrev_b32 v{t1}, 8, v{t1}")
    e(f"v_lshl_add_u32 v{t1}, v{t0}, 6, v{t1}")
    e(f"v_bfe_u32 v{t0}, v{vLANE}, 4, 1")
    e(f"v_lshl_add_u32 v{t1}, v{t0}, 5, v{t1}")
    e(f"v_and_b32 v{t0}, 3, v{vLANE}")
    e(f"v_lshl_add_u32 v{t1}, v{t0}, 3, v{t1}")
    e(f"v_add_u32 v{vVA}, {(2 + b) * RING}, v{t1}")
    for t in range(1, 4): e(f"v_xor_b32 v{vVA + t}, {64 * t}, v{vVA}")
    e(f"v_bfe_u32 v{t0}, v{vLANE}, 5, 1")
    e(f"v_lshlrev_b32 v{t0}, 14, v{t0}")
    e(f"v_bfe_u32 v{t1}, v{vLANE}, 4, 1")
    e(f"v_lshl_add_u32 v{t0}, v{t1}, 12, v{t0}")
    e(f"v_and_b32 v{t1}, 3, v{vLANE}")
    e(f"v_lshl_add_u32 v{t0}, v{t1}, 6, v{t0}")
    e(f"v_bfe_u32 v{t1}, v{vLANE}, 2, 2")
    e(f"v_lshl_add_u32 v{t0}, v{t1}, 4, v{t0}")
    e(f"s_lshr_b32 s{sT0}, s{sW1K}, 2")
    e(f"s_add_u32 s{sT0}, s{sT0}, {b * 262144}")
    e(f"v_add_u32 v{vWOFF}, s{sT0}, v{t0}")

def kread(p, t, s): p.e(f"ds_read_b128 {vr(vKV + 4 * s, 4)}, v{vKA + s} offset:{(t % 5) * SLOT}")
def vread(p, t, f):
    u, dt = f // 4, f % 4
    for half in range(2):
        p.e(f"ds_read_b64_tr_b16 {vr(vKV + 4 * f + 2 * half, 2)}, v{vVA + dt} offset:{(t % 5) * SLOT + (16 * u + 8 * half) * 256}")

def rowmax(p, dst, tmp):
    e = p.e
    e(f"v_max3_f32 v{dst}, v{vS}, v{vS+1}, v{vS+2}")
    for i in range(3, 15, 2): e(f"v_max3_f32 v{dst}, v{dst}, v{vS+i}, v{vS+i+1}")
    e(f"v_max_f32 v{dst}, v{dst}, v{vS+15}")
    e(f"v_mov_b32 v{tmp}, v{dst}")
    e(f"v_permlane32_swap_b32 v{dst}, v{tmp}")
    e(f"v_max_f32 v{dst}, v{dst}, v{tmp}")

def attention(p, role):
    e = p.e
    b = 0 if role == 'P' else 1
    half = (0,) if role == 'P' else (1,)
    late = (role == 'L' and Opt.stagger)
    att_setup(p, b)
    for s in range(8): kread(p, 0, s)
    def sync(t):
        need = [('V', bb, t) for bb in range(2)] + [('K', bb, t + 1) for bb in range(2)]
        p.wait_tags(need)
        p.barrier(f'B{t}')
        todo = []
        if t == 0: todo += [('K', 4)]
        todo += [('V', t + 4), ('K', t + 5)]
        for kind, tt in todo:
            if tt < 16:
                for bb in range(2): dma_tile(p, kind, bb, tt, half)
        if t == 12: wo_load(p, 0, vRAW[1])
        if t == 13: wo_load(p, 1, vRAW[2])
    for t in range(16):
        if late: sync(t)
        for s in range(8):
            cin = ("0" if t == 0 else vr(vNM, 16)) if s == 0 else vr(vS, 16)
            e(f"v_mfma_f32_32x32x16_bf16 {vr(vS, 16)}, {vr(vKV + 4 * s, 4)}, {vr(vQ + 4 * s, 4)}, {cin}")
        if not late: sync(t)
        if t == 15: wo_load(p, 2, vRAW[0])
        for f in range(8): vread(p, t, f)
        if t == 0:
            rowmax(p, vTMP, vTMP + 1)
            for i in range(16): e(f"v_sub_f32 v{vS+i}, v{vS+i}, v{vTMP}")
            for i in range(16): e(f"v_sub_f32 v{vNM+i}, 0, v{vTMP}")
        else:
            e(f"s_mov_b32 s{sTILE}, {t}")
            p.e("s_nop 7")
            p.label(f"SM_{role}_{t}")
        for i in range(0, 16, 2):
            a = vTMP + (i % 4)
            e(f"v_exp_f32 v{a}, v{vS+i}")
            e(f"v_exp_f32 v{a+1}, v{vS+i+1}")
            if i >= 2:
                pa = vTMP + ((i - 2) % 4)
                e(f"v_cvt_pk_bf16_f32 v{vP + (i - 2) // 2}, v{pa}, v{pa+1}")
            if i == 0: e(f"v_add_f32 v{vTS}, v{a}, v{a+1}")
            else:
                e(f"v_add_f32 v{vTS}, v{vTS}, v{a}"); e(f"v_add_f32 v{vTS}, v{vTS}, v{a+1}")
        e(f"v_cvt_pk_bf16_f32 v{vP + 7}, v{vTMP+2}, v{vTMP+3}")
        if t == 0: e(f"v_mov_b32 v{vL}, v{vTS}")
        else:
            e(f"v_cmp_lt_f32 vcc, s{sTHR}, v{vTS}")
            e(f"s_cbranch_vccnz FIX_{role}")
            e(f"v_add_f32 v{vL}, v{vL}, v{vTS}")
        for f in range(8):
            u, dt = f // 4, f % 4
            cin = "0" if (t == 0 and u == 0) else vr(vO + 16 * dt, 16)
            e(f"v_mfma_f32_32x32x16_bf16 {vr(vO + 16 * dt, 16)}, {vr(vKV + 4 * f, 4)}, {vr(vP + 4 * u, 4)}, {cin}")
            if t < 15: kread(p, t + 1, f)
    stamp(p, 3)
    e(f"v_mov_b32 v{vTMP}, v{vL}")
    e(f"v_permlane32_swap_b32 v{vL}, v{vTMP}")
    e(f"v_add_f32 v{vL}, v{vL}, v{vTMP}")
    e(f"v_rcp_f32 v{vL}, v{vL}")
    t0, t1 = vTMP, vTMP + 1
    e(f"v_and_b32 v{t0}, 15, v{vLANE}"); e(f"v_lshlrev_b32 v{t0}, 4, v{t0}")
    e(f"v_bfe_u32 v{t1}, v{vLANE}, 4, 1"); e(f"v_lshl_add_u32 v{t0}, v{t1}, 10, v{t0}")
    e(f"v_lshrrev_b32 v{t1}, 5, v{vLANE}"); e(f"v_lshl_add_u32 v{t0}, v{t1}, 8, v{t0}")
    e(f"s_lshl_b32 s{sT0}, s{sW1K}, 4"); e(f"s_add_u32 s{sT0}, s{sT0}, {OBUF + b * 2048}")
    e(f"v_add_u32 v{vBA1}, s{sT0}, v{t0}")
    for dt in range(4):
        for i in range(16): e(f"v_mul_f32 v{vO + 16 * dt + i}, v{vO + 16 * dt + i}, v{vL}")
        for w in range(8): e(f"v_cvt_pk_bf16_f32 v{vKV + 8 * dt + w}, v{vO + 16 * dt + 2 * w}, v{vO + 16 * dt + 2 * w + 1}")
        for mm in range(2): e(f"ds_write_b128 v{vBA1}, {vr(vKV + 8 * dt + 4 * mm, 4)} offset:{dt * 4096 + mm * 512}")
    p.barrier('o')

def fix(p, role):
    e = p.e
    p.label(f"FIX_{role}")
    p.settle()
    rowmax(p, vTMP, vTMP + 1)
    e(f"v_max_f32 v{vTMP}, 0, v{vTMP}")
    e(f"v_exp_f32 v{vTMP+1}, -v{vTMP}")
    for i in range(16): e(f"v_sub_f32 v{vS+i}, v{vS+i}, v{vTMP}")
    for i in range(16): e(f"v_sub_f32 v{vNM+i}, v{vNM+i}, v{vTMP}")
    for i in range(64): e(f"v_mul_f32 v{vO+i}, v{vO+i}, v{vTMP+1}")
    e(f"v_mul_f32 v{vL}, v{vL}, v{vTMP+1}")
    p.settle()
    for t in range(1, 15):
        e(f"s_cmp_eq_u32 s{sTILE}, {t}")
        e(f"s_cbranch_scc1 SM_{role}_{t}")
    e(f"s_branch SM_{role}_15")

def outproj(p, role):
    e = p.e
    kh = 0 if role == 'P' else 1
    bufs = [vRAW[1], vRAW[2], vRAW[0]]
    e(f"v_lshlrev_b32 v{vBA0}, 4, v{vLANE}")
    def bread(s, qt):
        if qt == 0:
            e(f"s_add_u32 s{sT2}, s{sROT}, {s}"); e(f"s_and_b32 s{sT2}, s{sT2}, 7"); e(f"s_lshl_b32 s{sT2}, s{sT2}, 12")
            e(f"v_add_u32 v{vBA1}, s{sT2}, v{vBA0}")
        e(f"ds_read_b128 {vr(vBF + 4 * qt, 4)}, v{vBA1} offset:{OBUF + kh * 32768 + qt * 1024}")
    for qt in range(4): bread(0, qt)
    proj(p, 8, bufs, wo_load, bread)
    stamp(p, 4)
    give = [2, 3] if kh == 0 else [0, 1]
    keep = [0, 1] if kh == 0 else [2, 3]
    e(f"s_lshl_b32 s{sT0}, s{sW1K}, 3")
    e(f"s_add_u32 s{sT0}, s{sT0}, {EXBUF}")
    e(f"v_add_u32 v{vBA1}, s{sT0}, v{vBA0}")
    for ql in range(2):
        for j in range(4):
            r = 128 + (ql * 4 + j) * 4
            for w in range(4): e(f"v_cvt_pk_bf16_f32 v{r + w}, v{acc(2 * w, give[ql]) + j}, v{acc(2 * w + 1, give[ql]) + j}")
            e(f"ds_write_b128 v{vBA1}, {vr(r, 4)} offset:{kh * 32768 + (ql * 4 + j) * 1024}")
    p.barrier('ex')
    for i in range(8): e(f"ds_read_b128 {vr(160 + 4 * i, 4)}, v{vBA1} offset:{(1 - kh) * 32768 + i * 1024}")
    e(f"s_lshl_b32 s{sT0}, s{sGRP}, 19"); e(f"s_lshl_b32 s{sT1}, s{sG}, 13"); e(f"s_add_u32 s{sT0}, s{sT0}, s{sT1}")
    e(f"s_lshl_b32 s{sT1}, s{sWAVE}, 10"); e(f"s_add_u32 s{sT0}, s{sT0}, s{sT1}")
    for ql in range(2):
        for j in range(4):
            i = ql * 4 + j
            for c in range(8):
                e(f"v_dot2c_f32_bf16 v{acc(c, keep[ql]) + j}, s{sHI1 if c % 2 else sLO1}, v{160 + 4 * i + c // 2}")
            for w in range(4): e(f"v_cvt_pk_bf16_f32 v{192 + 4 * i + w}, v{acc(2 * w, keep[ql]) + j}, v{acc(2 * w + 1, keep[ql]) + j}")
            e(f"buffer_store_dwordx4 {vr(192 + 4 * i, 4)}, v{vBA0}, {srd(sWS)}, s{sT0} offen sc1")
            if i < 7: e(f"s_add_u32 s{sT0}, s{sT0}, 65536")
    p.wait_vm(0)
    stamp(p, 5)
    p.barrier('pub')

def reduce_out(p, role):
    e = p.e
    kh = 0 if role == 'P' else 1
    if role == 'P':
        e(f"s_cmp_lg_u32 s{sWAVE}, 0")
        e(f"s_cbranch_scc1 L_nopoll")
        e(f"s_lshl_b32 s{sT0}, s{sGRP}, 2")
        e(f"v_mov_b32 v1, s{sT0}")
        e(f"v_mov_b32 v2, 1")
        e(f"s_mov_b64 exec, 1")
        e(f"buffer_atomic_add v2, v1, {srd(sDBG)}, 0 offen sc1")
        e(f"s_mov_b32 s{sT2}, 0x40000")
        p.label("L_poll")
        e(f"s_sub_u32 s{sT2}, s{sT2}, 1")
        e(f"s_cbranch_scc1 L_pollx")
        e(f"buffer_load_dword v3, v1, {srd(sDBG)}, 0 offen sc1")
        p.wait_vm(0)
        e(f"v_readfirstlane_b32 s{sT1}, v3")
        e(f"s_cmp_lt_u32 s{sT1}, 8")
        e(f"s_cbranch_scc1 L_poll")
        p.label("L_pollx")
        e(f"s_mov_b64 exec, -1")
        p.label("L_nopoll")
    p.barrier('go')
    stamp(p, 6)
    e(f"s_lshl_b32 s{sT0}, s{sGRP}, 19"); e(f"s_lshl_b32 s{sT1}, s{sG}, 16"); e(f"s_add_u32 s{sT0}, s{sT0}, s{sT1}")
    e(f"s_lshl_b32 s{sT1}, s{sWAVE}, 10"); e(f"s_add_u32 s{sT0}, s{sT0}, s{sT1}")
    for g in range(8):
        e(f"buffer_load_dwordx4 {vr(4 * g, 4)}, v{vBA0}, {srd(sWS)}, s{sT0} offen sc1")
        if g < 7: e(f"s_add_u32 s{sT0}, s{sT0}, 8192")
    e(f"v_and_b32 v48, 15, v{vLANE}"); e(f"v_lshlrev_b32 v48, 11, v48")
    e(f"v_lshrrev_b32 v49, 4, v{vLANE}"); e(f"v_lshl_add_u32 v48, v49, 4, v48")
    e(f"s_lshl_b32 s{sT0}, s{sBP}, 17"); e(f"s_add_u32 s{sT0}, s{sT0}, {kh * 65536}")
    e(f"s_lshr_b32 s{sT1}, s{sG}, 2"); e(f"s_lshl_b32 s{sT1}, s{sT1}, 15"); e(f"s_add_u32 s{sT0}, s{sT0}, s{sT1}")
    e(f"s_lshl_b32 s{sT1}, s{sP}, 10"); e(f"s_add_u32 s{sT0}, s{sT0}, s{sT1}")
    e(f"s_lshr_b32 s{sT1}, s{sW1K}, 2"); e(f"s_add_u32 s{sT0}, s{sT0}, s{sT1}")
    e(f"s_and_b32 s{sT1}, s{sG}, 3"); e(f"s_lshl_b32 s{sT1}, s{sT1}, 6"); e(f"s_add_u32 s{sT0}, s{sT0}, s{sT1}")
    for c in range(8):
        if c % 2: e(f"v_and_b32 v{32 + c}, 0xffff0000, v{c // 2}")
        else: e(f"v_lshlrev_b32 v{32 + c}, 16, v{c // 2}")
    for g in range(1, 8):
        for c in range(8): e(f"v_dot2c_f32_bf16 v{32 + c}, s{sHI1 if c % 2 else sLO1}, v{4 * g + c // 2}")
    for w in range(4): e(f"v_cvt_pk_bf16_f32 v{40 + w}, v{32 + 2 * w}, v{33 + 2 * w}")
    e(f"buffer_store_dwordx4 v[40:43], v48, {srd(sOUT)}, s{sT0} offen")
    if Opt.stamps:
        p.wait_vm(0)
        stamp(p, 7)
        p.wait_lg(0)
        e(f"s_lshl_b32 s{sT0}, s2, 3"); e(f"s_add_u32 s{sT0}, s{sT0}, s{sWAVE}"); e(f"s_lshl_b32 s{sT0}, s{sT0}, 5")
        e(f"s_add_u32 s{sT0}, s{sT0}, {128 * 1024 * 1024}")
        for i in range(8): e(f"v_mov_b32 v{i}, s{sST + 2 * i}")
        e("v_mov_b32 v8, 0")
        e("s_mov_b64 exec, 1")
        e(f"buffer_store_dwordx4 v[0:3], v8, {srd(sWS)}, s{sT0} offen")
        e(f"buffer_store_dwordx4 v[4:7], v8, {srd(sWS)}, s{sT0} offen offset:16")
    e("s_endpgm")

def build():
    p0 = Prog()
    prologue(p0)
    p0.e(f"s_cmp_ge_u32 s{sWAVE}, 4")
    p0.e("s_cbranch_scc1 L_role")
    P = p0.fork(); L = p0.fork()
    phase1_P(P); attention(P, 'P'); outproj(P, 'P'); reduce_out(P, 'P')
    L.label("L_role")
    phase1_L(L); attention(L, 'L'); outproj(L, 'L'); reduce_out(L, 'L')
    assert P.bars == L.bars, (P.bars, L.bars)
    F = Prog(); fix(F, 'P'); fix(F, 'L')
    F.label("L_end"); F.e("s_endpgm")
    hdr = open("cdna_kernels/" + NAME + ".s.ref").read().split("; Override")[0]
    s = hdr + "; @launch grid=(256,1,1) block=(512,1,1) lds=163840\n" + HEADER
    s += f".globl {KN}\n.p2align 8\n.type {KN},@function\n{KN}:\n"
    s += p0.text() + P.text() + L.text() + F.text()
    s += kernel_desc(KN, 256, 256, 102).replace(".text\n", "")
    print("instrs", p0.nins, P.nins, L.nins, "nop states", P.nops, L.nops, file=sys.stderr)
    return s

if __name__ == "__main__":
    out = sys.argv[1]
    for a in sys.argv[2:]:
        k, v = a.split("=")
        setattr(Opt, k, eval(v))
    open(out, "w").write(build())
    assemble(out, out.replace(".s", ".co"), KN)
```

```python
import re

REG = re.compile(r'^(-|\|)?([vsa])(\d+)\|?$')
RNG = re.compile(r'^(-)?([vsa])\[(\d+):(\d+)\]$')

def regs_of(tok):
    tok = tok.strip()
    m = REG.match(tok)
    if m: return [(m.group(2), int(m.group(3)))]
    m = RNG.match(tok)
    if m: return [(m.group(2), i) for i in range(int(m.group(3)), int(m.group(4)) + 1)]
    if tok == 'vcc': return [('s', 106), ('s', 107)]
    if tok == 'm0': return [('s', 124)]
    if tok == 'exec': return [('s', 126), ('s', 127)]
    return []

TRANS = ('v_exp_', 'v_log_', 'v_rcp_', 'v_rsq_', 'v_sqrt_', 'v_sin_', 'v_cos_')

class Ins:
    __slots__ = ('text', 'op', 'kind', 'wr', 'rd', 'states', 'passes', 'srcc', 'srcab', 'wide', 'dma', 'D')
    def __init__(self, text):
        self.text = text
        t = text.split(';')[0].strip()
        parts = t.split(None, 1)
        op = parts[0]; self.op = op
        rest = parts[1] if len(parts) > 1 else ''
        ops = [o.strip() for o in rest.split(',')] if rest else []
        mods = []
        if ops:
            sp = ops[-1].split()
            ops[-1] = sp[0] if sp else ''
            mods = sp[1:]
        R = [regs_of(o) for o in ops]
        flat = lambda L: set(x for r in L for x in r)
        self.states = 1; self.passes = 0; self.srcc = set(); self.srcab = set(); self.wide = False; self.dma = False; self.D = None
        if op.startswith('v_mfma'):
            self.kind = 'mfma'; self.wr = set(R[0]); self.rd = flat(R[1:]); self.srcc = set(R[3]); self.srcab = flat(R[1:3])
            self.passes = 8 if '32x32' in op else 4; self.D = tuple(R[0])
        elif op.startswith('v_permlane') and 'swap' in op:
            self.kind = 'valu'; self.wr = flat(R); self.rd = flat(R)
        elif op.startswith('v_'):
            self.kind = 'valu'; self.wr = set(R[0]) if R else set(); self.rd = flat(R[1:])
            if op.startswith(('v_dot2c', 'v_fmac', 'v_mac')): self.rd |= self.wr
            if op.startswith('v_cndmask') and len(ops) == 3: self.rd |= set(regs_of('vcc'))
        elif op.startswith('ds_read'):
            self.kind = 'ds'; self.wr = set(R[0]); self.rd = flat(R[1:])
        elif op.startswith('ds_'):
            self.kind = 'ds'; self.wr = set(); self.rd = flat(R)
        elif op.startswith('buffer_load'):
            self.kind = 'vmem'
            if 'lds' in mods:
                self.wr = set(); self.rd = flat(R) | set(regs_of('m0')); self.dma = True
            else:
                self.wr = set(R[0]); self.rd = flat(R[1:])
        elif op.startswith('buffer_atomic'):
            self.kind = 'vmem'; self.rd = flat(R); self.wr = set(R[0]) if 'sc0' in mods else set()
        elif op.startswith('buffer_'):
            self.kind = 'vmem'; self.wr = set(); self.rd = flat(R)
            if 'x4' in op or 'x3' in op: self.wide = True; self.D = tuple(R[0])
        elif op.startswith(('s_load', 's_memrealtime', 's_memtime')):
            self.kind = 'smem'; self.wr = set(R[0]); self.rd = flat(R[1:])
        elif op == 's_nop':
            self.kind = 'nop'; self.wr = set(); self.rd = set(); self.states = int(ops[0]) + 1
        elif op.startswith(('s_cmp', 's_waitcnt', 's_barrier', 's_cbranch', 's_branch', 's_sleep', 's_setprio', 's_endpgm', 's_bitcmp')):
            self.kind = 'sctl'; self.wr = set(); self.rd = flat(R)
            if op.startswith('s_cbranch_vcc'): self.rd |= set(regs_of('vcc'))
        elif op.startswith('s_'):
            self.kind = 'salu'; self.wr = set(R[0]); self.rd = flat(R[1:])
            if 'saveexec' in op: self.wr |= set(regs_of('exec'))
        else:
            raise ValueError('unknown op ' + text)

def vonly(s): return set(x for x in s if x[0] in 'va')
def sonly(s): return set(x for x in s if x[0] == 's')

def need(J, I):
    n = 0
    if J.kind == 'valu':
        jv = vonly(J.wr); js = sonly(J.wr)
        if I.kind == 'mfma' and jv & I.rd: n = max(n, 3 if J.op.startswith('v_dot') else 2)
        if I.op.startswith('v_permlane') and jv & I.rd: n = max(n, 2)
        if I.op.startswith(('v_readfirstlane', 'v_readlane')) and jv & I.rd: n = max(n, 1)
        if J.op.startswith(TRANS) and I.kind in ('valu', 'ds', 'vmem') and jv & (I.rd | I.wr): n = max(n, 1)
        if J.op.startswith('v_dot'):
            if jv & (I.rd | I.wr):
                same_c = (I.op == J.op and I.wr == J.wr and not (jv & (I.rd - I.wr)))
                if not same_c: n = max(n, 3)
        if js:
            if I.kind == 'vmem' and js & I.rd: n = max(n, 5)
            if I.kind == 'valu' and js & I.rd: n = max(n, 2)
            if I.kind in ('salu', 'sctl') and js & I.rd: n = max(n, 1)
            if ('s', 126) in js and I.kind == 'mfma': n = max(n, 4)
    if J.kind == 'mfma':
        big = J.passes == 8
        if I.kind == 'mfma':
            if J.wr & I.srcab: n = max(n, 12 if big else 8)
            if J.wr & I.srcc:
                if not (J.wr == I.srcc and J.passes == I.passes): n = max(n, 10 if big else 6)
            elif J.wr & I.wr: n = max(n, 10 if big else 6)
        elif I.kind in ('valu', 'ds', 'vmem'):
            if J.wr & (I.rd | I.wr): n = max(n, 12 if big else 8)
            if J.srcc & I.wr: n = max(n, 7 if big else 3)
    if J.kind == 'salu' and ('s', 124) in J.wr and I.dma: n = max(n, 1)
    if J.kind == 'salu' and ('s', 126) in J.wr and I.kind in ('valu', 'mfma', 'ds', 'vmem'): n = max(n, 0)
    if J.kind == 'vmem' and J.wide and set(J.D) & I.wr: n = max(n, 2)
    if J.kind == 'ds' and not J.wr and '128' in J.op and vonly(J.rd) & I.wr and I.kind == 'valu': n = max(n, 2)
    return n

class Prog:
    def __init__(self):
        self.out = []
        self.hist = []
        self.vm = []
        self.lg = []
        self.sm = []
        self.bars = []
        self.nins = 0
        self.nops = 0
    def fork(self):
        p = Prog(); p.hist = list(self.hist); p.vm = [list(e) for e in self.vm]; p.lg = [list(e) for e in self.lg]
        p.sm = list(self.sm); p.bars = list(self.bars)
        return p
    def merge(self, other):
        p = self.fork()
        assert self.bars == other.bars, (self.bars, other.bars)
        for name in ('vm', 'lg'):
            a = getattr(self, name); b = getattr(other, name)
            n = max(len(a), len(b)); out = []
            for k in range(n):
                regs = set(); tags = set()
                for l in (a, b):
                    i = len(l) - n + k
                    if i >= 0:
                        regs |= l[i][0]
                        tags |= (l[i][1] if isinstance(l[i][1], set) else {l[i][1]})
                out.append([regs, tags])
            setattr(p, name, out)
        p.sm = list(set(self.sm) | set(other.sm))
        p.hist = []
        return p
    def raw(self, text): self.out.append(text)
    def label(self, name): self.out.append(name + ':')
    def comment(self, c): self.out.append('; ' + c)
    def _push(self, I):
        d = 0; req = 0
        for J in reversed(self.hist[-24:]):
            r = need(J, I) - d
            if r > req: req = r
            d += J.states
            if d >= 20: break
        while req > 0:
            k = min(req, 16)
            N = Ins(f's_nop {k-1}'); self.hist.append(N); self.out.append(N.text); req -= k; self.nops += k
        self.hist.append(I); self.out.append(I.text); self.nins += 1
        if len(self.hist) > 64: self.hist = self.hist[-32:]
    def _wait(self, vm=None, lg=None):
        t = []
        if vm is not None and vm < len(self.vm):
            vm = min(vm, 63); t.append(f'vmcnt({vm})'); self.vm = self.vm[len(self.vm) - vm:] if vm else []
        if lg is not None and (lg < len(self.lg) or (lg == 0 and self.sm)):
            lg = min(lg, 15)
            if self.sm: lg = 0; self.sm = []
            t.append(f'lgkmcnt({lg})'); self.lg = self.lg[len(self.lg) - lg:] if lg else []
        if t: self._push(Ins('s_waitcnt ' + ' '.join(t)))
    def e(self, text, tag=None, touch=None):
        I = Ins(text)
        only_wait = touch is not None
        touch = (I.rd | I.wr) if touch is None else set(touch)
        vmw = None; lgw = None
        for i, en in enumerate(self.vm):
            if en[0] & touch: vmw = len(self.vm) - 1 - i
        for i, en in enumerate(self.lg):
            if en[0] & touch: lgw = len(self.lg) - 1 - i
        if any(r in touch for r in self.sm): lgw = 0
        self._wait(vmw, lgw)
        if only_wait: return None
        if I.kind == 'vmem' and len(self.vm) >= 63: self._wait(vm=62)
        self._push(I)
        if I.kind == 'vmem': self.vm.append([set(I.wr), {tag}])
        elif I.kind == 'ds': self.lg.append([set(I.wr), tag])
        elif I.kind == 'smem': self.sm += list(I.wr)
        return I
    def wait_tags(self, tags):
        w = None
        for i, en in enumerate(self.vm):
            if en[1] & set(tags): w = len(self.vm) - 1 - i
        self._wait(vm=w)
    def wait_vm(self, n=0): self._wait(vm=n)
    def wait_lg(self, n=0): self._wait(lg=n)
    def barrier(self, name):
        self._wait(lg=0)
        self.bars.append(name)
        self.e(f's_barrier ; {name}')
    def settle(self):
        self.e('s_nop 15')
    def text(self): return '\n'.join(self.out) + '\n'
```

```python
import sys, math, struct
from asmdsl import Prog
from common import *

NAME = "concat_heads__gqa_block_cached__gqa_block_cached__near_ridge"
KN = NAME + "_kernel"

def f2u(x): return struct.unpack('<I', struct.pack('<f', x))[0]

class Opt:
    stamps = False
    stagger = True
    thr = 2.0 ** 14
    sleep = 4
    dbg = ""
    pbars = [1, 3, 5, 7, 9, 11, 13, 15]
    kvA = {1: "0", 5: "1", 9: "2", 13: "3"}
    kvB = {3: "0", 7: "1", 11: "2", 15: "3"}
    warm = True
    vint = True
    grot = True
    att = "U4,U5,U6,U7,U8,U9,U10,U11,U12,U13,U14,U15,N w0,w1,,w2"
    warmpt = 'a'
    snappt = 3
    pairmap = True
    fine = 0
    kvrot = 0
    pollmax = 0x4000

sX, sK, sV, sWQ, sWO, sWS, sOUT, sDBG = 8, 12, 16, 20, 24, 28, 32, 36
sWAVE, sG, sP, sBP, sROT, sSELLO, sSELHI, sSCALE, sTHR, sTILE, sW1K, sGRP = 40, 41, 42, 43, 44, 45, 46, 47, 48, 49, 50, 51
sT0, sT1, sT2, sT3, sT4, sT5 = 52, 53, 54, 55, 56, 57
sLO1, sHI1 = 58, 59
sCLS, sKOFF, sNON = 60, 61, 62
sJ = 96
sJT = [None, 96, 97, 98, 99, 100, 101, 4]
sKVR = 5
sST = 64
def srd(b): return f"s[{b}:{b+3}]"
def vr(a, n): return f"v[{a}:{a+n-1}]" if n > 1 else f"v{a}"

SLOT = 8192
RING = 5 * SLOT
def kslot(b, t): return b * RING + (t % 5) * SLOT
def vslot(b, t): return (2 + b) * RING + (t % 5) * SLOT
def xslot(c): return (c % 4) * RING + (3 + c // 4) * SLOT
def qslot(h): return h * RING + 4 * SLOT
OBUF = 0
EXBUF = 2 * RING

vO, vKV, vS, vNM, vQ = 0, 64, 96, 112, 128
vACC = 0
vRAW = [128, 160, 192]
vP, vTMP = 224, 232
vFR = 224
vBF = 236
vKA, vVA = 236, 244
vL, vDK, vDV, vTS = 248, 249, 250, 251
vWOFF, vBA0, vBA1, vLANE = 252, 253, 254, 255
vWA = vBA1

def acc(c, qt): return vACC + (c * 4 + qt) * 4

def stamp(p, i):
    if Opt.stamps and (not Opt.fine or i in (0, 7)): p.e(f"s_memrealtime s[{sST+2*i}:{sST+2*i+1}]")
FINE = [1, 2, 3, 4, 5, 6, 8, 9, 10, 11, 12, 13]
def fstamp(p, t, k):
    if Opt.fine and t in (Opt.fine, Opt.fine + 1):
        i = FINE[(t - Opt.fine) * 6 + k]
        p.raw(f"s_memtime s[{sST+2*i}:{sST+2*i+1}]")

def prologue(p):
    e = p.e
    e("s_cmp_ge_u32 s2, 256")
    e("s_cbranch_scc1 L_end")
    e("s_load_dwordx16 s[64:79], s[0:1], 0")
    e("s_load_dwordx8 s[80:87], s[0:1], 64")
    e("s_load_dwordx2 s[88:89], s[0:1], 96")
    e("v_lshrrev_b32 v1, 6, v0")
    e(f"v_and_b32 v{vLANE}, 63, v0")
    e(f"v_readfirstlane_b32 s{sWAVE}, v1")
    e(f"s_lshr_b32 s{sBP}, s2, 4")
    if Opt.pairmap:
        e(f"s_and_b32 s{sP}, s2, 1")
        e(f"s_bfe_u32 s{sG}, s2, 0x10003")
        e(f"s_and_b32 s{sT0}, s2, 6")
        e(f"s_or_b32 s{sG}, s{sG}, s{sT0}")
    else:
        e(f"s_and_b32 s{sG}, s2, 7")
        e(f"s_bfe_u32 s{sP}, s2, 0x10003")
    e(f"s_lshl_b32 s{sGRP}, s{sBP}, 1")
    e(f"s_or_b32 s{sGRP}, s{sGRP}, s{sP}")
    e(f"s_lshr_b32 s{sROT}, s{sBP}, 1")
    if Opt.grot:
        e(f"s_lshl_b32 s{sT0}, s{sG}, 2"); e(f"s_add_u32 s{sROT}, s{sROT}, s{sT0}"); e(f"s_and_b32 s{sROT}, s{sROT}, 7")
    e(f"s_and_b32 s{sCLS}, s{sBP}, 1")
    for j in range(1, 8): e(f"s_mov_b32 s{sJT[j]}, {j * 8192}")
    if Opt.kvrot == 1: e(f"s_lshl_b32 s{sKVR}, s{sBP}, 13")
    if Opt.kvrot == 2: e(f"s_add_u32 s{sKVR}, s{sBP}, s2"); e(f"s_lshl_b32 s{sKVR}, s{sKVR}, 13")
    e(f"s_mov_b32 s{sSELLO}, 0x05040100")
    e(f"s_mov_b32 s{sSELHI}, 0x07060302")
    e(f"s_mov_b32 s{sSCALE}, 0x{f2u(128 ** -0.5 * math.log2(math.e)):08x}")
    e(f"s_mov_b32 s{sTHR}, 0x{f2u(Opt.thr):08x}")
    e(f"s_mov_b32 s{sLO1}, 0x00003f80")
    e(f"s_mov_b32 s{sHI1}, 0x3f800000")
    e(f"s_and_b32 s{sW1K}, s{sWAVE}, 3")
    e(f"s_lshl_b32 s{sW1K}, s{sW1K}, 10")
    e(f"s_cmp_eq_u32 s{sP}, 0")
    for d, a in ((sX, 64), (sK, 66), (sV, 68), (sWQ, 70), (sWO, 72)):
        e(f"s_cselect_b32 s{d}, s{a}, s{a+10}")
        e(f"s_cselect_b32 s{d+1}, s{a+1}, s{a+11}")
    e(f"s_lshl_b32 s{sT0}, s{sBP}, 16")
    e(f"s_add_u32 s{sX}, s{sX}, s{sT0}"); e(f"s_addc_u32 s{sX+1}, s{sX+1}, 0")
    e(f"s_mov_b32 s{sX+2}, 65536"); e(f"s_mov_b32 s{sX+3}, 0x00020000")
    e(f"s_lshl_b32 s{sT0}, s{sBP}, 21"); e(f"s_lshl_b32 s{sT1}, s{sG}, 17"); e(f"s_add_u32 s{sT0}, s{sT0}, s{sT1}")
    for d in (sK, sV):
        e(f"s_add_u32 s{d}, s{d}, s{sT0}"); e(f"s_addc_u32 s{d+1}, s{d+1}, 0")
        e(f"s_mov_b32 s{d+2}, {1048576 + 131072}"); e(f"s_mov_b32 s{d+3}, 0x00020000")
    e(f"s_lshl_b32 s{sT0}, s{sG}, 10")
    e(f"s_add_u32 s{sWQ}, s{sWQ}, s{sT0}"); e(f"s_addc_u32 s{sWQ+1}, s{sWQ+1}, 0")
    e(f"s_mov_b32 s{sWQ+2}, {4194304 - 7 * 1024}"); e(f"s_mov_b32 s{sWQ+3}, 0x00020000")
    if 'h' in Opt.dbg:
        e(f"s_cmp_eq_u32 s{sCLS}, 1"); e(f"s_cselect_b32 s{sWQ+2}, 0, s{sWQ+2}")
    e(f"s_lshl_b32 s{sT0}, s{sG}, 19")
    e(f"s_add_u32 s{sWO}, s{sWO}, s{sT0}"); e(f"s_addc_u32 s{sWO+1}, s{sWO+1}, 0")
    e(f"s_mov_b32 s{sWO+2}, 524288"); e(f"s_mov_b32 s{sWO+3}, 0x00020000")
    e(f"s_mov_b32 s{sOUT}, s84"); e(f"s_mov_b32 s{sOUT+1}, s85"); e(f"s_mov_b32 s{sOUT+2}, 2097152"); e(f"s_mov_b32 s{sOUT+3}, 0x00020000")
    e(f"s_mov_b32 s{sDBG}, s86"); e(f"s_mov_b32 s{sDBG+1}, s87"); e(f"s_mov_b32 s{sDBG+2}, 256"); e(f"s_mov_b32 s{sDBG+3}, 0x00020000")
    e(f"s_mov_b32 s{sWS}, s88"); e(f"s_mov_b32 s{sWS+1}, s89"); e(f"s_mov_b32 s{sWS+2}, 268435456"); e(f"s_mov_b32 s{sWS+3}, 0x00020000")
    stamp(p, 0)
    if Opt.stamps: e(f"s_memtime s[{sST+28}:{sST+29}]")

def dma_addr_setup(p):
    e = p.e
    t0, t1, t2 = vTMP, vTMP + 1, vTMP + 2
    e(f"v_lshrrev_b32 v{t0}, 4, v{vLANE}")
    e(f"s_lshr_b32 s{sT0}, s{sW1K}, 8")
    e(f"v_add_u32 v{t1}, s{sT0}, v{t0}")
    e(f"v_and_b32 v{t2}, 15, v{vLANE}")
    e(f"v_xor_b32 v{vDK}, v{t2}, v{t1}")
    e(f"v_lshlrev_b32 v{vDK}, 4, v{vDK}")
    e(f"v_lshl_add_u32 v{vDK}, v{t1}, 8, v{vDK}")
    e(f"v_lshlrev_b32 v{t0}, 2, v{t0}")
    e(f"v_xor_b32 v{vDV}, v{t2}, v{t0}")
    e(f"v_lshlrev_b32 v{vDV}, 4, v{vDV}")
    e(f"v_lshl_add_u32 v{vDV}, v{t1}, 8, v{vDV}")

def dma_tile(p, kind, b, t, halves):
    base = kslot(b, t) if kind == 'K' else vslot(b, t)
    for hf in halves:
        if Opt.kvrot:
            p.e(f"s_add_u32 s{sT0}, s{sKVR}, {t * 8192}")
            p.e(f"s_and_b32 s{sT0}, s{sT0}, 0x1ffff")
            p.e(f"s_or_b32 s{sT0}, s{sT0}, {b * 1048576 + hf * 4096}")
        else:
            p.e(f"s_mov_b32 s{sT0}, {b * 1048576 + t * 8192 + hf * 4096}")
        p.e(f"s_add_u32 m0, s{sW1K}, {base + hf * 4096}")
        p.e(f"buffer_load_dwordx4 v{vDK if kind == 'K' else vDV}, {srd(sK if kind == 'K' else sV)}, s{sT0} offen nt lds", tag=(kind, b, t))

def wq_load(p, s, buf):
    e = p.e
    th = []
    def pre():
        if s % 2 == 0:
            if s > 0:
                e(f"s_add_u32 s{sKOFF}, s{sKOFF}, {1 << 19}"); e(f"s_and_b32 s{sKOFF}, s{sKOFF}, {(1 << 22) - 1}")
            e(f"v_add_u32 v{vWA}, s{sKOFF}, v{vWOFF}")
        else:
            e(f"v_xor_b32 v{vWA}, {1 << 18}, v{vWA}")
    th.append(pre)
    for j in range(8):
        th.append(lambda j=j: e(f"buffer_load_dwordx4 {vr(buf + 4 * j, 4)}, v{vWA}, {srd(sWQ)}, {'0' if j == 0 else 's%d' % sJT[j]} offen"))
    return th

def wo_load(p, s, buf):
    e = p.e
    th = []
    def pre():
        e(f"s_add_u32 s{sT1}, s{sROT}, {s}"); e(f"s_and_b32 s{sT1}, s{sT1}, 7"); e(f"s_lshl_b32 s{sT4}, s{sT1}, 15"); e(f"s_add_u32 s{sT5}, s{sT4}, 8192")
    th.append(pre)
    for j in range(8):
        th.append(lambda j=j: e(f"buffer_load_dwordx4 {vr(buf + 4 * j, 4)}, v{vWOFF}, {srd(sWO)}, s{sT4 if j < 4 else sT5} offen offset:{(j % 4) * 1024}"))
    return th

def run(th):
    for t in th: t()

def perm_frag(p, raw, c, fr):
    for m in range(4):
        p.e(f"v_perm_b32 v{fr + m}, v{raw + 4 * (2 * m + 1) + c // 2}, v{raw + 4 * (2 * m) + c // 2}, s{sSELHI if c % 2 else sSELLO}")

def perm1(p, raw, c, fr, m):
    p.e(f"v_perm_b32 v{fr + m}, v{raw + 4 * (2 * m + 1) + c // 2}, v{raw + 4 * (2 * m) + c // 2}, s{sSELHI if c % 2 else sSELLO}")

ORDER = [(c, q) for c in range(6) for q in range(4)] + [(c, q) for q in range(4) for c in (6, 7)]
PERMS = {}
def _pp(gaps, d, c):
    for m, g in enumerate(gaps): PERMS.setdefault(g, []).append((d, c, m))
_pp([24, 25, 26, 27], 1, 0); PERMS.setdefault(30, []).append((1, 1, 0)); PERMS.setdefault(31, []).append((1, 1, 1))
PERMS.setdefault(0, []).append((0, 1, 2)); PERMS.setdefault(1, []).append((0, 1, 3))
_pp([2, 3, 4, 5], 0, 2); _pp([6, 7, 8, 9], 0, 3); _pp([10, 11, 12, 13], 0, 4); _pp([14, 15, 16, 17], 0, 5)
_pp([17, 18, 18, 19], 0, 6); _pp([19, 20, 21, 22], 0, 7)
LOADGAP = [23, 28, 29, 0, 2, 4, 6, 8, 10]

def proj(p, nks, bufs, load, bread, mid=None, late2=False):
    frag = lambda s, c: vFR + 4 * ((8 * s + c) % 3)
    def waitbuf(s):
        p.e(f"s_nop 0 ; waitbuf", touch=[('v', bufs[s % 3] + i) for i in range(32)])
    waitbuf(0)
    for m in range(4): perm1(p, bufs[0], 0, frag(0, 0), m)
    for m in range(2): perm1(p, bufs[0], 1, frag(0, 1), m)
    pend = {}
    if late2:
        for g, t in zip([0, 1, 3, 5, 7, 9, 11, 13, 15], load(p, 2, bufs[2])): pend[(0, g)] = t
    for s in range(nks):
        for m, (c, qt) in enumerate(ORDER):
            cin = "0" if s == 0 else vr(acc(c, qt), 4)
            if not ('m' in Opt.dbg and m % 4): p.e(f"v_mfma_f32_16x16x32_bf16 {vr(acc(c, qt), 4)}, {vr(frag(s, c), 4)}, {vr(vBF + 4 * qt, 4)}, {cin}")
            if m == 22 and mid: mid(s)
            if c == 7 and s + 1 < nks: bread(s + 1, qt)
            if m == 24 and s + 1 < nks: waitbuf(s + 1)
            for (d, cc, mm) in PERMS.get(m, []):
                if s + d < nks and not ('m' in Opt.dbg and m % 4): perm1(p, bufs[(s + d) % 3], cc, frag(s + d, cc), mm)
            if m == 23 and s + 3 < nks:
                th = load(p, s + 3, bufs[s % 3])
                for g, t in zip(LOADGAP, th): pend[(s if g >= 23 else s + 1, g)] = t
            if (s, m) in pend: pend.pop((s, m))()
    assert not pend

def phase1_P(p):
    e = p.e
    e(f"v_lshrrev_b32 v1, 4, v{vLANE}")
    e(f"v_and_b32 v2, 15, v{vLANE}")
    e(f"v_lshlrev_b32 v3, 4, v2")
    e(f"v_lshl_add_u32 v{vWOFF}, v1, 16, v3")
    e(f"s_lshr_b32 s{sT0}, s{sW1K}, 2")
    e(f"s_lshl_b32 s{sT1}, s{sCLS}, 18"); e(f"s_add_u32 s{sT0}, s{sT0}, s{sT1}")
    e(f"v_add_u32 v{vWOFF}, s{sT0}, v{vWOFF}")
    e(f"s_lshl_b32 s{sKOFF}, s{sROT}, 19")
    run(wq_load(p, 0, vRAW[0]))
    e(f"v_lshrrev_b32 v3, 1, v2")
    e(f"v_xor_b32 v3, v3, v1")
    e(f"v_lshlrev_b32 v3, 4, v3")
    e(f"v_lshl_add_u32 v{vBA0}, v2, 7, v3")
    e(f"s_lshl_b32 s{sT1}, s{sCLS}, 6"); e(f"v_xor_b32 v{vBA0}, s{sT1}, v{vBA0}")
    p.barrier('a')
    run(wq_load(p, 1, vRAW[1]))
    cur = [0]
    def bread(s, qt):
        c, half = s // 2, s % 2
        want = xslot(c)
        if qt == 0 and s > 0:
            e(f"v_xor_b32 v{vBA0}, 64, v{vBA0}")
            if not (0 <= want - cur[0] and want - cur[0] + 3 * 2048 <= 65535):
                d = want - cur[0]
                e(f"v_add_u32 v{vBA0}, {d & 0xffffffff}, v{vBA0}"); cur[0] = want
        e(f"ds_read_b128 {vr(vBF + 4 * qt, 4)}, v{vBA0} offset:{want - cur[0] + qt * 2048}")
    p.barrier('x0')
    stamp(p, 1)
    for qt in range(4): bread(0, qt)
    def mid(s):
        if s in Opt.pbars: p.barrier(f's{s}')
        if s == 3: stamp(p, 9)
        if s == 7: stamp(p, 8)
    proj(p, 16, vRAW, wq_load, bread, mid, late2=True)
    stamp(p, 2)
    e(f"v_lshlrev_b32 v{vBA0}, 4, v{vLANE}")
    e(f"s_mul_i32 s{sT0}, s{sWAVE}, {RING}")
    e(f"v_add_u32 v{vBA0}, s{sT0}, v{vBA0}")
    for b, dst in ((1, 160), (0, vQ)):
        for j in range(4):
            for ql in range(2):
                qt = 2 * b + ql
                for c in range(8): e(f"v_mul_f32 v{acc(c, qt) + j}, s{sSCALE}, v{acc(c, qt) + j}")
                for w in range(4):
                    e(f"v_cvt_pk_bf16_f32 v{dst + (4 * ql + j) * 4 + w}, v{acc(2 * w, qt) + j}, v{acc(2 * w + 1, qt) + j}")
        for j in range(4):
            for w in range(4):
                e(f"v_permlane16_swap_b32 v{dst + j * 4 + w}, v{dst + (4 + j) * 4 + w}")
        if b == 1:
            for s in range(8): e(f"ds_write_b128 v{vBA0}, {vr(dst + 4 * s, 4)} offset:{4 * SLOT + s * 1024}")
            p.barrier('q1')
    dma_addr_setup(p)

def phase1_L(p, sched, tag):
    e = p.e
    def grp(t):
        for kind in 'KV':
            for b in range(2): dma_tile(p, kind, b, t, (0, 1))
    def xch(c):
        e(f"s_add_u32 s{sT0}, s{sROT}, {c}"); e(f"s_and_b32 s{sT0}, s{sT0}, 7"); e(f"s_lshl_b32 s{sT0}, s{sT0}, 7")
        for i in range(2):
            e(f"s_add_u32 m0, s{sT1}, {xslot(c) + i * 1024}")
            e(f"buffer_load_dwordx4 v{1 + i}, {srd(sX)}, s{sT0} offen lds", tag=('x', c))
    def warm():
        if Opt.warm:
            e(f"v_and_b32 v3, 1, v{vLANE}"); e(f"v_lshlrev_b32 v3, 20, v3")
            e(f"buffer_load_dword v4, v3, {srd(sK)}, 0 offen"); e(f"buffer_load_dword v5, v3, {srd(sV)}, 0 offen")
            e(f"buffer_load_dword v6, off, {srd(sWO)}, 0")
            e(f"s_lshl_b32 s{sT0}, s{sGRP}, 19"); e(f"buffer_load_dword v7, off, {srd(sWS)}, s{sT0}")
            e(f"s_lshl_b32 s{sT0}, s{sBP}, 17"); e(f"buffer_load_dword v9, off, {srd(sOUT)}, s{sT0}")
        e(f"v_lshrrev_b32 v3, 3, v{vLANE}"); e(f"v_and_b32 v10, 7, v{vLANE}"); e(f"v_lshlrev_b32 v10, 2, v10"); e(f"v_lshl_add_u32 v10, v3, 8, v10")
        e(f"s_lshl_b32 s{sT0}, s{sW1K}, 18"); e(f"v_add_u32 v10, s{sT0}, v10")
        e(f"s_lshl_b32 s{sT0}, s{sGRP}, 11"); e(f"s_add_u32 s{sT0}, s{sT0}, {FLAGS}")
        e(f"buffer_load_dword v8, v10, {srd(sWS)}, s{sT0} offen sc1")
    def snap():
        e(f"s_mov_b32 s{sNON}, 0")
        e("s_nop 0", touch=[('v', 8)])
        p.label(f"L_snap_{tag}")
        e(f"s_add_u32 s{sNON}, s{sNON}, 1")
        e(f"v_cmp_eq_u32 vcc, s{sNON}, v8")
        e(f"s_cbranch_vccnz L_snap_{tag}")
        e(f"v_mov_b32 v8, s{sNON}")
        e(f"s_lshl_b32 s{sT0}, s{sG}, 8"); e(f"s_add_u32 s{sT0}, s{sT0}, s{sW1K}"); e(f"s_lshl_b32 s{sT2}, s{sGRP}, 2"); e(f"s_add_u32 s{sT0}, s{sT0}, s{sT2}")
        e(f"v_lshlrev_b32 v10, 8, v{vLANE}"); e(f"v_add_u32 v10, s{sT0}, v10")
        e(f"buffer_store_dword v8, v10, {srd(sDBG)}, 0 offen sc1")
    def at(pt):
        if pt == Opt.warmpt: warm()
        if pt == Opt.snappt: snap()
        for t in sched.get(pt, ""): grp(int(t))
    e(f"s_lshl_b32 s{sT1}, s{sW1K}, 1")
    for c in range(4): xch(c)
    at('a')
    p.barrier('a')
    p.wait_tags([('x', c) for c in range(4)])
    p.barrier('x0')
    stamp(p, 1)
    for c in range(4, 8): xch(c)
    at('x')
    for k in Opt.pbars:
        if k == 7: p.wait_tags([('x', c) for c in range(8)])
        p.barrier(f's{k}')
        if k == 3: stamp(p, 9)
        if k == 7: stamp(p, 8)
        if k == 15: stamp(p, 2)
        at(k)
    p.wait_tags([('K', 0, 0), ('K', 1, 0)])
    p.barrier('q1')
    for s in range(8): e(f"ds_read_b128 {vr(vQ + 4 * s, 4)}, v{vBA0} offset:{4 * SLOT + s * 1024}")
    at('q')

def phase1_L_pre(p):
    e = p.e
    e(f"v_lshrrev_b32 v1, 3, v{vLANE}")
    e(f"v_lshrrev_b32 v2, 4, v{vLANE}")
    e(f"v_and_b32 v3, 7, v{vLANE}")
    e("v_xor_b32 v2, v2, v3")
    e("v_lshlrev_b32 v2, 4, v2")
    e("v_lshl_add_u32 v1, v1, 10, v2")
    e(f"s_lshl_b32 s{sT0}, s{sW1K}, 4")
    e(f"v_add_u32 v1, s{sT0}, v1")
    e("v_xor_b32 v2, 64, v1")
    e("v_add_u32 v2, 8192, v2")
    dma_addr_setup(p)
    e(f"v_lshlrev_b32 v{vBA0}, 4, v{vLANE}")
    e(f"s_sub_u32 s{sT0}, s{sWAVE}, 4")
    e(f"s_mul_i32 s{sT0}, s{sT0}, {RING}")
    e(f"v_add_u32 v{vBA0}, s{sT0}, v{vBA0}")

def att_setup(p, b):
    e = p.e
    t0, t1, t2 = vTMP, vTMP + 1, vTMP + 2
    e(f"v_and_b32 v{t0}, 31, v{vLANE}")
    e(f"v_lshrrev_b32 v{t1}, 5, v{vLANE}")
    e(f"v_lshlrev_b32 v{t1}, 3, v{t1}")
    e(f"v_and_b32 v{t2}, 15, v{vLANE}")
    e(f"v_xor_b32 v{t1}, v{t1}, v{t2}")
    e(f"v_lshlrev_b32 v{t1}, 4, v{t1}")
    e(f"v_lshl_add_u32 v{t1}, v{t0}, 8, v{t1}")
    e(f"v_add_u32 v{vKA}, {b * RING}, v{t1}")
    for s in range(1, 8): e(f"v_xor_b32 v{vKA + s}, {16 * s}, v{vKA}")
    e(f"v_bfe_u32 v{t0}, v{vLANE}, 2, 2")
    e(f"v_lshrrev_b32 v{t1}, 5, v{vLANE}")
    e(f"v_lshl_add_u32 v{t1}, v{t1}, 2, v{t0}")
    e(f"v_lshlrev_b32 v{t1}, 8, v{t1}")
    e(f"v_lshl_add_u32 v{t1}, v{t0}, 6, v{t1}")
    e(f"v_bfe_u32 v{t0}, v{vLANE}, 4, 1")
    e(f"v_lshl_add_u32 v{t1}, v{t0}, 5, v{t1}")
    e(f"v_and_b32 v{t0}, 3, v{vLANE}")
    e(f"v_lshl_add_u32 v{t1}, v{t0}, 3, v{t1}")
    e(f"v_add_u32 v{vVA}, {(2 + b) * RING}, v{t1}")
    for t in range(1, 4): e(f"v_xor_b32 v{vVA + t}, {64 * t}, v{vVA}")
    e(f"v_bfe_u32 v{t0}, v{vLANE}, 5, 1")
    e(f"v_lshlrev_b32 v{t0}, 14, v{t0}")
    e(f"v_bfe_u32 v{t1}, v{vLANE}, 4, 1")
    e(f"v_lshl_add_u32 v{t0}, v{t1}, 12, v{t0}")
    e(f"v_and_b32 v{t1}, 15, v{vLANE}")
    e(f"v_lshl_add_u32 v{t0}, v{t1}, 4, v{t0}")
    e(f"s_lshr_b32 s{sT0}, s{sW1K}, 2")
    e(f"s_add_u32 s{sT0}, s{sT0}, {b * 262144}")
    e(f"v_add_u32 v{vWOFF}, s{sT0}, v{t0}")

def kread(p, t, s): p.e(f"ds_read_b128 {vr(vKV + 4 * s, 4)}, v{vKA + s} offset:{(t % 5) * SLOT}")
def vread(p, t, f, halves=(0, 1)):
    u, dt = f // 4, f % 4
    for half in halves:
        p.e(f"ds_read_b64_tr_b16 {vr(vKV + 4 * f + 2 * half, 2)}, v{vVA + dt} offset:{(t % 5) * SLOT + (16 * u + 8 * half) * 256}")

def rowmax(p, dst, tmp):
    e = p.e
    e(f"v_max3_f32 v{dst}, v{vS}, v{vS+1}, v{vS+2}")
    for i in range(3, 15, 2): e(f"v_max3_f32 v{dst}, v{dst}, v{vS+i}, v{vS+i+1}")
    e(f"v_max_f32 v{dst}, v{dst}, v{vS+15}")
    e(f"v_mov_b32 v{tmp}, v{dst}")
    e(f"v_permlane32_swap_b32 v{dst}, v{tmp}")
    e(f"v_max_f32 v{dst}, v{dst}, v{tmp}")

vNON = vBA0
NONCE_LDS = 152 * 1024
def nonce_load(p):
    e = p.e
    e(f"s_lshl_b32 s{sT0}, s{sGRP}, 2"); e(f"s_add_u32 s{sT0}, s{sT0}, s{sW1K}")
    e(f"v_mov_b32 v{vBA1}, s{sT0}")
    e(f"buffer_load_dword v{vNON}, v{vBA1}, {srd(sDBG)}, 0 offen sc1")
def nonce_get(p):
    e = p.e
    e(f"v_readfirstlane_b32 s{sNON}, v{vNON}")
    e(f"s_mov_b32 s{sT4}, {Opt.pollmax}")
    e(f"s_cmp_lg_u32 s{sWAVE}, 4")
    e(f"s_cbranch_scc1 L_non_ok")
    p.label("L_non")
    e(f"s_cmp_lg_u32 s{sNON}, 0")
    e(f"s_cbranch_scc1 L_non_ok")
    e(f"s_sub_u32 s{sT4}, s{sT4}, 1")
    e(f"s_cbranch_scc1 L_non_ok")
    p.raw(f"buffer_load_dword v{vNON}, v{vBA1}, {srd(sDBG)}, 0 offen sc1")
    p.raw("s_waitcnt vmcnt(0)")
    p.raw(f"v_readfirstlane_b32 s{sNON}, v{vNON}")
    p.raw("s_nop 1")
    e("s_branch L_non")
    p.label("L_non_ok")

def attention(p, role):
    e = p.e
    b = 0 if role == 'P' else 1
    half = (0,) if role == 'P' else (1,)
    late = (role == 'L' and Opt.stagger)
    att_setup(p, b)
    for s in range(8): kread(p, 0, s)
    plan = [x.split() for x in Opt.att.split(",")]
    assert len(plan) == 16
    wob = [vRAW[1], vRAW[2], vRAW[0]]
    def sync(t):
        need = [('V', bb, t) for bb in range(2)] + [('K', bb, t + 1) for bb in range(2)]
        p.wait_tags(need)
        p.barrier(f'B{t}')
        if t == 0:
            for bb in range(2): dma_tile(p, 'K', bb, 4, half)
        for it in plan[t]:
            if it[0] == 'U':
                n = int(it[1:]); assert t + 1 <= n <= t + 4
                for kind, tt in (('V', n), ('K', n + 1)):
                    if tt < 16:
                        for bb in range(2): dma_tile(p, kind, bb, tt, half)
            elif it == 'W':
                e(f"s_lshl_b32 s{sT0}, s{sBP}, 15"); e(f"s_lshl_b32 s{sT1}, s{sWAVE}, 12"); e(f"s_add_u32 s{sT0}, s{sT0}, s{sT1}")
                e(f"v_lshlrev_b32 v{vBA0}, 4, v{vLANE}")
                for j in range(4): e(f"buffer_load_dwordx4 {vr(vRAW[2] + 4 * j, 4)}, v{vBA0}, {srd(sWO)}, s{sT0} offen offset:{j * 1024}")
            elif it == 'N':
                if role == 'L': nonce_load(p)
            elif it[0] == 'w':
                sw = int(it[1:])
                if sw < 2:
                    run(wo_load(p, sw, wob[sw]))
    for t in range(16):
        if t == 0: stamp(p, 10)
        if t in (4, 8, 12) and 'x' not in Opt.dbg: stamp(p, 10 + t // 4)
        fstamp(p, t, 0)
        if late: sync(t)
        if late: fstamp(p, t, 1)
        for s in range(8):
            cin = ("0" if t == 0 else vr(vNM, 16)) if s == 0 else vr(vS, 16)
            e(f"v_mfma_f32_32x32x16_bf16 {vr(vS, 16)}, {vr(vKV + 4 * s, 4)}, {vr(vQ + 4 * s, 4)}, {cin}")
        fstamp(p, t, 1 + late)
        if not late: sync(t)
        if not late: fstamp(p, t, 2)
        if t == 15: run(wo_load(p, 2, vRAW[0]))
        vq = [(f, h) for f in range(8) for h in range(2)]
        def vnext(n=1):
            for _ in range(n):
                if vq:
                    f, h = vq.pop(0); vread(p, t, f, (h,))
        vnext(16 if t == 0 or not Opt.vint else 4 if late else 2)
        if t == 0:
            rowmax(p, vTMP, vTMP + 1)
            for i in range(16): e(f"v_sub_f32 v{vS+i}, v{vS+i}, v{vTMP}")
            for i in range(16): e(f"v_sub_f32 v{vNM+i}, 0, v{vTMP}")
        else:
            e(f"s_mov_b32 s{sTILE}, {t}")
            p.label(f"SM_{role}_{t}")
        fstamp(p, t, 3)
        for i in range(0, 16, 2):
            a = vTMP + (i % 4)
            e(f"v_exp_f32 v{a}, v{vS+i}")
            vnext()
            e(f"v_exp_f32 v{a+1}, v{vS+i+1}")
            vnext()
            if i >= 2:
                pa = vTMP + ((i - 2) % 4)
                e(f"v_cvt_pk_bf16_f32 v{vP + (i - 2) // 2}, v{pa}, v{pa+1}")
            if i == 0: e(f"v_add_f32 v{vTS}, v{a}, v{a+1}")
            else:
                e(f"v_add_f32 v{vTS}, v{vTS}, v{a}"); e(f"v_add_f32 v{vTS}, v{vTS}, v{a+1}")
        e(f"v_cvt_pk_bf16_f32 v{vP + 7}, v{vTMP+2}, v{vTMP+3}")
        if t == 0: e(f"v_mov_b32 v{vL}, v{vTS}")
        else:
            e(f"v_cmp_lt_f32 vcc, s{sTHR}, v{vTS}")
            e(f"s_cbranch_vccnz FIX_{role}")
            e(f"v_add_f32 v{vL}, v{vL}, v{vTS}")
        fstamp(p, t, 4)
        for f in range(8):
            if f == 1: fstamp(p, t, 5)
            u, dt = f // 4, f % 4
            cin = "0" if (t == 0 and u == 0) else vr(vO + 16 * dt, 16)
            e(f"v_mfma_f32_32x32x16_bf16 {vr(vO + 16 * dt, 16)}, {vr(vKV + 4 * f, 4)}, {vr(vP + 4 * u, 4)}, {cin}")
            if t < 15: kread(p, t + 1, f)
    stamp(p, 3)
    if role == 'L': nonce_get(p)
    e(f"v_mov_b32 v{vTMP}, v{vL}")
    e(f"v_permlane32_swap_b32 v{vL}, v{vTMP}")
    e(f"v_add_f32 v{vL}, v{vL}, v{vTMP}")
    e(f"v_rcp_f32 v{vL}, v{vL}")
    t0, t1 = vTMP, vTMP + 1
    e(f"v_and_b32 v{t0}, 15, v{vLANE}"); e(f"v_lshlrev_b32 v{t0}, 4, v{t0}")
    e(f"v_bfe_u32 v{t1}, v{vLANE}, 4, 1"); e(f"v_lshl_add_u32 v{t0}, v{t1}, 10, v{t0}")
    e(f"v_lshrrev_b32 v{t1}, 5, v{vLANE}"); e(f"v_lshl_add_u32 v{t0}, v{t1}, 8, v{t0}")
    e(f"s_lshl_b32 s{sT0}, s{sW1K}, 4"); e(f"s_add_u32 s{sT0}, s{sT0}, {OBUF + b * 2048}")
    e(f"v_add_u32 v{vBA1}, s{sT0}, v{t0}")
    for dt in range(4):
        for i in range(16): e(f"v_mul_f32 v{vO + 16 * dt + i}, v{vO + 16 * dt + i}, v{vL}")
        for w in range(8): e(f"v_cvt_pk_bf16_f32 v{vKV + 8 * dt + w}, v{vO + 16 * dt + 2 * w}, v{vO + 16 * dt + 2 * w + 1}")
        for mm in range(2): e(f"ds_write_b128 v{vBA1}, {vr(vKV + 8 * dt + 4 * mm, 4)} offset:{dt * 4096 + mm * 512}")
    if role == 'L':
        e(f"s_add_u32 s{sT0}, s{sW1K}, {NONCE_LDS}")
        e(f"v_mov_b32 v{vTMP}, s{sT0}"); e(f"v_mov_b32 v{vTMP + 2}, s{sNON}")
        e(f"ds_write_b32 v{vTMP}, v{vTMP + 2}")
    p.barrier('o')

def fix(p, role):
    e = p.e
    p.label(f"FIX_{role}")
    p.settle()
    rowmax(p, vTMP, vTMP + 1)
    e(f"v_max_f32 v{vTMP}, 0, v{vTMP}")
    e(f"v_exp_f32 v{vTMP+1}, -v{vTMP}")
    for i in range(16): e(f"v_sub_f32 v{vS+i}, v{vS+i}, v{vTMP}")
    for i in range(16): e(f"v_sub_f32 v{vNM+i}, v{vNM+i}, v{vTMP}")
    for i in range(64): e(f"v_mul_f32 v{vO+i}, v{vO+i}, v{vTMP+1}")
    e(f"v_mul_f32 v{vL}, v{vL}, v{vTMP+1}")
    p.settle()
    for t in range(1, 15):
        e(f"s_cmp_eq_u32 s{sTILE}, {t}")
        e(f"s_cbranch_scc1 SM_{role}_{t}")
    e(f"s_branch SM_{role}_15")

def outproj(p, role):
    e = p.e
    kh = 0 if role == 'P' else 1
    bufs = [vRAW[1], vRAW[2], vRAW[0]]
    e(f"v_lshlrev_b32 v{vBA0}, 4, v{vLANE}")
    def bread(s, qt):
        if qt == 0:
            e(f"s_add_u32 s{sT2}, s{sROT}, {s}"); e(f"s_and_b32 s{sT2}, s{sT2}, 7"); e(f"s_lshl_b32 s{sT2}, s{sT2}, 12")
            e(f"v_add_u32 v{vBA1}, s{sT2}, v{vBA0}")
        e(f"ds_read_b128 {vr(vBF + 4 * qt, 4)}, v{vBA1} offset:{OBUF + kh * 32768 + qt * 1024}")
    for qt in range(4): bread(0, qt)
    proj(p, 8, bufs, wo_load, bread)
    stamp(p, 4)
    give = [2, 3] if kh == 0 else [0, 1]
    keep = [0, 1] if kh == 0 else [2, 3]
    e(f"s_lshl_b32 s{sT0}, s{sW1K}, 3")
    e(f"s_add_u32 s{sT0}, s{sT0}, {EXBUF}")
    e(f"v_add_u32 v{vBA1}, s{sT0}, v{vBA0}")
    for ql in range(2):
        for j in range(4):
            r = 128 + (ql * 4 + j) * 4
            for w in range(4): e(f"v_cvt_pk_bf16_f32 v{r + w}, v{acc(2 * w, give[ql]) + j}, v{acc(2 * w + 1, give[ql]) + j}")
            e(f"ds_write_b128 v{vBA1}, {vr(r, 4)} offset:{kh * 32768 + (ql * 4 + j) * 1024}")
    p.barrier('ex')
    for i in range(8): e(f"ds_read_b128 {vr(160 + 4 * i, 4)}, v{vBA1} offset:{(1 - kh) * 32768 + i * 1024}")
    e(f"v_mov_b32 v128, {NONCE_LDS}")
    e(f"ds_read_b32 v129, v128")
    e(f"v_lshrrev_b32 v131, 4, v{vLANE}"); e(f"v_and_b32 v130, 15, v{vLANE}"); e(f"v_lshlrev_b32 v130, 4, v130"); e(f"v_lshl_add_u32 v130, v131, 16, v130")
    e(f"s_lshl_b32 s{sT0}, s{sGRP}, 19"); e(f"s_lshl_b32 s{sT1}, s{sG}, 10"); e(f"s_add_u32 s{sT0}, s{sT0}, s{sT1}")
    e(f"s_lshl_b32 s{sT1}, s{sWAVE}, 13"); e(f"s_add_u32 s{sT0}, s{sT0}, s{sT1}")
    for ql in range(2):
        for j in range(4):
            i = ql * 4 + j
            for c in range(8):
                e(f"v_dot2c_f32_bf16 v{acc(c, keep[ql]) + j}, s{sHI1 if c % 2 else sLO1}, v{160 + 4 * i + c // 2}")
            for w in range(4): e(f"v_cvt_pk_bf16_f32 v{192 + 4 * i + w}, v{acc(2 * w, keep[ql]) + j}, v{acc(2 * w + 1, keep[ql]) + j}")
            e(f"buffer_store_dwordx4 {vr(192 + 4 * i, 4)}, v130, {srd(sWS)}, s{sT0} offen offset:{j * 256} sc1")
            if i == 3: e(f"s_add_u32 s{sT0}, s{sT0}, {4 * 65536}")
    e(f"s_lshl_b32 s{sT2}, s{sGRP}, 3"); e(f"s_add_u32 s{sT2}, s{sT2}, s{sWAVE}"); e(f"s_lshl_b32 s{sT2}, s{sT2}, 8")
    e(f"s_add_u32 s{sT2}, s{sT2}, {FLAGS}")
    e(f"s_lshl_b32 s{sT3}, s{sG}, 2"); e(f"s_add_u32 s{sT3}, s{sT3}, s{sT2}")
    e(f"v_lshlrev_b32 v128, 2, v{vLANE}")
    p.wait_lg(0)
    p.wait_vm(0)
    e(f"s_mov_b64 exec, 1")
    e(f"buffer_store_dword v129, v128, {srd(sWS)}, s{sT3} offen sc1")
    stamp(p, 5)

FLAGS = 16 * 1024 * 1024
def reduce_out(p, role):
    e = p.e
    kh = 0 if role == 'P' else 1
    e(f"s_mov_b64 exec, 0xff")
    e(f"s_mov_b32 s{sT4}, {Opt.pollmax}")
    p.label(f"L_poll_{role}")
    e(f"buffer_load_dword v130, v128, {srd(sWS)}, s{sT2} offen sc1")
    e(f"s_sub_u32 s{sT4}, s{sT4}, 1")
    e(f"s_cbranch_scc1 L_pollx_{role}")
    p.wait_vm(0)
    e(f"v_cmp_ne_u32 vcc, v130, v129")
    e(f"s_cbranch_vccz L_pollx_{role}")
    if Opt.sleep: e(f"s_sleep {Opt.sleep}")
    e(f"s_branch L_poll_{role}")
    p.label(f"L_pollx_{role}")
    e(f"s_mov_b64 exec, -1")
    stamp(p, 6)
    e(f"s_lshl_b32 s{sT0}, s{sGRP}, 19"); e(f"s_lshl_b32 s{sT1}, s{sG}, 16"); e(f"s_add_u32 s{sT0}, s{sT0}, s{sT1}")
    e(f"s_lshl_b32 s{sT1}, s{sWAVE}, 13"); e(f"s_add_u32 s{sT0}, s{sT0}, s{sT1}")
    e(f"s_add_u32 s{sT1}, s{sT0}, 4096")
    for g in range(8):
        e(f"buffer_load_dwordx4 {vr(4 * g, 4)}, v{vBA0}, {srd(sWS)}, s{sT0 if g < 4 else sT1} offen offset:{(g % 4) * 1024} sc1")
    e(f"v_and_b32 v48, 15, v{vLANE}"); e(f"v_lshlrev_b32 v48, 11, v48")
    e(f"v_lshrrev_b32 v49, 4, v{vLANE}"); e(f"v_lshl_add_u32 v48, v49, 4, v48")
    e(f"s_lshl_b32 s{sT0}, s{sBP}, 17"); e(f"s_add_u32 s{sT0}, s{sT0}, {kh * 65536}")
    e(f"s_lshr_b32 s{sT1}, s{sG}, 2"); e(f"s_lshl_b32 s{sT1}, s{sT1}, 15"); e(f"s_add_u32 s{sT0}, s{sT0}, s{sT1}")
    e(f"s_lshl_b32 s{sT1}, s{sP}, 10"); e(f"s_add_u32 s{sT0}, s{sT0}, s{sT1}")
    e(f"s_lshr_b32 s{sT1}, s{sW1K}, 2"); e(f"s_add_u32 s{sT0}, s{sT0}, s{sT1}")
    e(f"s_and_b32 s{sT1}, s{sG}, 3"); e(f"s_lshl_b32 s{sT1}, s{sT1}, 6"); e(f"s_add_u32 s{sT0}, s{sT0}, s{sT1}")
    for c in range(8):
        if c % 2: e(f"v_and_b32 v{32 + c}, 0xffff0000, v{c // 2}")
        else: e(f"v_lshlrev_b32 v{32 + c}, 16, v{c // 2}")
    for g in range(1, 8):
        for c in range(8): e(f"v_dot2c_f32_bf16 v{32 + c}, s{sHI1 if c % 2 else sLO1}, v{4 * g + c // 2}")
    for w in range(4): e(f"v_cvt_pk_bf16_f32 v{40 + w}, v{32 + 2 * w}, v{33 + 2 * w}")
    e(f"buffer_store_dwordx4 v[40:43], v48, {srd(sOUT)}, s{sT0} offen")
    if Opt.stamps:
        p.wait_vm(0)
        stamp(p, 7)
        e(f"s_memtime s[{sST+30}:{sST+31}]")
        p.wait_lg(0)
        e(f"s_lshl_b32 s{sT0}, s2, 3"); e(f"s_add_u32 s{sT0}, s{sT0}, s{sWAVE}"); e(f"s_lshl_b32 s{sT0}, s{sT0}, 6")
        e(f"s_add_u32 s{sT0}, s{sT0}, {128 * 1024 * 1024}")
        for i in range(16): e(f"v_mov_b32 v{i}, s{sST + 2 * i}")
        e("v_mov_b32 v16, 0")
        e("s_mov_b64 exec, 1")
        for i in range(4): e(f"buffer_store_dwordx4 v[{4*i}:{4*i+3}], v16, {srd(sWS)}, s{sT0} offen offset:{16*i}")
    e("s_endpgm")

def build():
    p0 = Prog()
    prologue(p0)
    p0.e(f"s_cmp_ge_u32 s{sWAVE}, 4")
    p0.e("s_cbranch_scc1 L_role")
    P = p0.fork(); L = p0.fork()
    phase1_P(P); attention(P, 'P'); outproj(P, 'P'); reduce_out(P, 'P')
    L.label("L_role")
    phase1_L_pre(L)
    L.e(f"s_cmp_eq_u32 s{sCLS}, 1")
    L.e("s_cbranch_scc1 L_clsB")
    LA = L.fork(); LB = L.fork()
    phase1_L(LA, Opt.kvA, 'A')
    LA.e("s_branch L_att")
    LB.label("L_clsB")
    phase1_L(LB, Opt.kvB, 'B')
    L2 = LA.merge(LB)
    L2.label("L_att")
    attention(L2, 'L'); outproj(L2, 'L'); reduce_out(L2, 'L')
    L.out += LA.out + LB.out + L2.out; L.bars = L2.bars; L.nins += LA.nins + LB.nins + L2.nins
    assert P.bars == L.bars, (P.bars, L.bars)
    F = Prog(); fix(F, 'P'); fix(F, 'L')
    F.label("L_end"); F.e("s_endpgm")
    hdr = open("cdna_kernels/" + NAME + ".s.ref").read().split("; Override")[0]
    s = hdr + "; @launch grid=(256,1,1) block=(512,1,1) lds=163840\n" + HEADER
    s += f".globl {KN}\n.p2align 8\n.type {KN},@function\n{KN}:\n"
    s += p0.text() + P.text() + L.text() + F.text()
    s += kernel_desc(KN, 256, 256, 102).replace(".text\n", "")
    print("instrs", p0.nins, P.nins, L.nins, "nop states", P.nops, L.nops, file=sys.stderr)
    return s

if __name__ == "__main__":
    out = sys.argv[1]
    for a in sys.argv[2:]:
        k, v = a.split("=")
        setattr(Opt, k, eval(v))
    open(out, "w").write(build())
    assemble(out, out.replace(".s", ".co"), KN)
```

```python
import sys, math, struct
from asmdsl import Prog
from common import *

NAME = "concat_heads__gqa_block_cached__gqa_block_cached__near_ridge"
KN = NAME + "_kernel"

def f2u(x): return struct.unpack('<I', struct.pack('<f', x))[0]

class Opt:
    stamps = False
    stagger = True
    thr = 2.0 ** 14
    sleep = 4
    dbg = ""
    pbars = [1, 3, 5, 7, 9, 11, 13, 15]
    kvA = {1: "0", 5: "1", 9: "2", 13: "3"}
    kvB = {3: "0", 7: "1", 11: "2", 15: "3"}
    warm = True
    vint = True
    grot = True
    att = "K4 U4,U5,U6,U7,U8,U9,U10,U11,U12,U13,U14,U15,N w0,w1,,^w2"
    warmpt = 'a'
    snappt = 3
    pairmap = True
    fine = 0
    kvrot = 0
    pollmax = 0x4000
    dmac = False
    sst = None

sX, sK, sV, sWQ, sWO, sWS, sOUT, sDBG = 8, 12, 16, 20, 24, 28, 32, 36
sWAVE, sG, sP, sBP, sROT, sSELLO, sSELHI, sSCALE, sTHR, sTILE, sW1K, sGRP = 40, 41, 42, 43, 44, 45, 46, 47, 48, 49, 50, 51
sT0, sT1, sT2, sT3, sT4, sT5 = 52, 53, 54, 55, 56, 57
sLO1, sHI1 = 58, 59
sCLS, sKOFF, sNON = 60, 61, 62
sJ = 96
sJT = [None, 96, 97, 98, 99, 100, 101, 4]
sKVR = 5
sDB, sDL = 6, 7
sST = 64
def srd(b): return f"s[{b}:{b+3}]"
def vr(a, n): return f"v[{a}:{a+n-1}]" if n > 1 else f"v{a}"

SLOT = 8192
RING = 5 * SLOT
def kslot(b, t): return b * RING + (t % 5) * SLOT
def vslot(b, t): return (2 + b) * RING + (t % 5) * SLOT
def xslot(c): return (c % 4) * RING + (3 + c // 4) * SLOT
def qslot(h): return h * RING + 4 * SLOT
OBUF = 0
EXBUF = 2 * RING

vO, vKV, vS, vNM, vQ = 0, 64, 96, 112, 128
vACC = 0
vRAW = [128, 160, 192]
vP, vTMP = 224, 232
vFR = 224
vBF = 236
vKA, vVA = 236, 244
vL, vDK, vDV, vTS = 248, 249, 250, 251
vWOFF, vBA0, vBA1, vLANE = 252, 253, 254, 255
vWA = vBA1

def acc(c, qt): return vACC + (c * 4 + qt) * 4

SORD = [1,9,8,2,10,11,12,13,3,4,5,6]
def sstamp(p, t):
    if Opt.sst and t in Opt.sst:
        i = SORD[Opt.sst.index(t)]
        p.e(f"s_memrealtime s[{sST+2*i}:{sST+2*i+1}]")
def stamp(p, i):
    if Opt.sst and i not in (0, 7): return
    if Opt.stamps and (not Opt.fine or i in (0, 7)): p.e(f"s_memrealtime s[{sST+2*i}:{sST+2*i+1}]")
FINE = [1, 2, 3, 4, 5, 6, 8, 9, 10, 11, 12, 13]
def fstamp(p, t, k):
    if Opt.fine and t in (Opt.fine, Opt.fine + 1):
        i = FINE[(t - Opt.fine) * 6 + k]
        p.raw(f"s_memtime s[{sST+2*i}:{sST+2*i+1}]")

def prologue(p):
    e = p.e
    e("s_cmp_ge_u32 s2, 256")
    e("s_cbranch_scc1 L_end")
    e("s_load_dwordx16 s[64:79], s[0:1], 0")
    e("s_load_dwordx8 s[80:87], s[0:1], 64")
    e("s_load_dwordx2 s[88:89], s[0:1], 96")
    e("v_lshrrev_b32 v1, 6, v0")
    e(f"v_and_b32 v{vLANE}, 63, v0")
    e(f"v_readfirstlane_b32 s{sWAVE}, v1")
    e(f"s_lshr_b32 s{sBP}, s2, 4")
    if Opt.pairmap:
        e(f"s_and_b32 s{sP}, s2, 1")
        e(f"s_bfe_u32 s{sG}, s2, 0x10003")
        e(f"s_and_b32 s{sT0}, s2, 6")
        e(f"s_or_b32 s{sG}, s{sG}, s{sT0}")
    else:
        e(f"s_and_b32 s{sG}, s2, 7")
        e(f"s_bfe_u32 s{sP}, s2, 0x10003")
    e(f"s_lshl_b32 s{sGRP}, s{sBP}, 1")
    e(f"s_or_b32 s{sGRP}, s{sGRP}, s{sP}")
    e(f"s_lshr_b32 s{sROT}, s{sBP}, 1")
    if Opt.grot:
        e(f"s_lshl_b32 s{sT0}, s{sG}, 2"); e(f"s_add_u32 s{sROT}, s{sROT}, s{sT0}"); e(f"s_and_b32 s{sROT}, s{sROT}, 7")
    e(f"s_and_b32 s{sCLS}, s{sBP}, 1")
    for j in range(1, 8): e(f"s_mov_b32 s{sJT[j]}, {j * 8192}")
    if Opt.kvrot == 1: e(f"s_lshl_b32 s{sKVR}, s{sBP}, 13")
    if Opt.kvrot == 2: e(f"s_add_u32 s{sKVR}, s{sBP}, s2"); e(f"s_lshl_b32 s{sKVR}, s{sKVR}, 13")
    e(f"s_mov_b32 s{sSELLO}, 0x05040100")
    e(f"s_mov_b32 s{sSELHI}, 0x07060302")
    e(f"s_mov_b32 s{sSCALE}, 0x{f2u(128 ** -0.5 * math.log2(math.e)):08x}")
    e(f"s_mov_b32 s{sTHR}, 0x{f2u(Opt.thr):08x}")
    e(f"s_mov_b32 s{sLO1}, 0x00003f80")
    e(f"s_mov_b32 s{sHI1}, 0x3f800000")
    e(f"s_and_b32 s{sW1K}, s{sWAVE}, 3")
    e(f"s_lshl_b32 s{sW1K}, s{sW1K}, 10")
    e(f"s_cmp_eq_u32 s{sP}, 0")
    for d, a in ((sX, 64), (sK, 66), (sV, 68), (sWQ, 70), (sWO, 72)):
        e(f"s_cselect_b32 s{d}, s{a}, s{a+10}")
        e(f"s_cselect_b32 s{d+1}, s{a+1}, s{a+11}")
    e(f"s_lshl_b32 s{sT0}, s{sBP}, 16")
    e(f"s_add_u32 s{sX}, s{sX}, s{sT0}"); e(f"s_addc_u32 s{sX+1}, s{sX+1}, 0")
    e(f"s_mov_b32 s{sX+2}, 65536"); e(f"s_mov_b32 s{sX+3}, 0x00020000")
    e(f"s_lshl_b32 s{sT0}, s{sBP}, 21"); e(f"s_lshl_b32 s{sT1}, s{sG}, 17"); e(f"s_add_u32 s{sT0}, s{sT0}, s{sT1}")
    for d in (sK, sV):
        e(f"s_add_u32 s{d}, s{d}, s{sT0}"); e(f"s_addc_u32 s{d+1}, s{d+1}, 0")
        e(f"s_mov_b32 s{d+2}, {1048576 + 131072}"); e(f"s_mov_b32 s{d+3}, 0x00020000")
    e(f"s_lshl_b32 s{sT0}, s{sG}, 10")
    e(f"s_add_u32 s{sWQ}, s{sWQ}, s{sT0}"); e(f"s_addc_u32 s{sWQ+1}, s{sWQ+1}, 0")
    e(f"s_mov_b32 s{sWQ+2}, {4194304 - 7 * 1024}"); e(f"s_mov_b32 s{sWQ+3}, 0x00020000")
    if 'h' in Opt.dbg:
        e(f"s_cmp_eq_u32 s{sCLS}, 1"); e(f"s_cselect_b32 s{sWQ+2}, 0, s{sWQ+2}")
    e(f"s_lshl_b32 s{sT0}, s{sG}, 19")
    e(f"s_add_u32 s{sWO}, s{sWO}, s{sT0}"); e(f"s_addc_u32 s{sWO+1}, s{sWO+1}, 0")
    e(f"s_mov_b32 s{sWO+2}, 524288"); e(f"s_mov_b32 s{sWO+3}, 0x00020000")
    e(f"s_mov_b32 s{sOUT}, s84"); e(f"s_mov_b32 s{sOUT+1}, s85"); e(f"s_mov_b32 s{sOUT+2}, 2097152"); e(f"s_mov_b32 s{sOUT+3}, 0x00020000")
    e(f"s_mov_b32 s{sDBG}, s86"); e(f"s_mov_b32 s{sDBG+1}, s87"); e(f"s_mov_b32 s{sDBG+2}, 256"); e(f"s_mov_b32 s{sDBG+3}, 0x00020000")
    e(f"s_mov_b32 s{sWS}, s88"); e(f"s_mov_b32 s{sWS+1}, s89"); e(f"s_mov_b32 s{sWS+2}, 268435456"); e(f"s_mov_b32 s{sWS+3}, 0x00020000")
    stamp(p, 0)
    if Opt.stamps: e(f"s_memtime s[{sST+28}:{sST+29}]")

def dma_addr_setup(p):
    e = p.e
    t0, t1, t2 = vTMP, vTMP + 1, vTMP + 2
    e(f"v_lshrrev_b32 v{t0}, 4, v{vLANE}")
    e(f"s_lshr_b32 s{sT0}, s{sW1K}, 8")
    e(f"v_add_u32 v{t1}, s{sT0}, v{t0}")
    e(f"v_and_b32 v{t2}, 15, v{vLANE}")
    e(f"v_xor_b32 v{vDK}, v{t2}, v{t1}")
    e(f"v_lshlrev_b32 v{vDK}, 4, v{vDK}")
    e(f"v_lshl_add_u32 v{vDK}, v{t1}, 8, v{vDK}")
    e(f"v_lshlrev_b32 v{t0}, 2, v{t0}")
    e(f"v_xor_b32 v{vDV}, v{t2}, v{t0}")
    e(f"v_lshlrev_b32 v{vDV}, 4, v{vDV}")
    e(f"v_lshl_add_u32 v{vDV}, v{t1}, 8, v{vDV}")

def dma_tile(p, kind, b, t, halves):
    base = kslot(b, t) if kind == 'K' else vslot(b, t)
    for hf in halves:
        if Opt.kvrot:
            p.e(f"s_add_u32 s{sT0}, s{sKVR}, {t * 8192}")
            p.e(f"s_and_b32 s{sT0}, s{sT0}, 0x1ffff")
            p.e(f"s_or_b32 s{sT0}, s{sT0}, {b * 1048576 + hf * 4096}")
        else:
            p.e(f"s_mov_b32 s{sT0}, {b * 1048576 + t * 8192 + hf * 4096}")
        p.e(f"s_add_u32 m0, s{sW1K}, {base + hf * 4096}")
        p.e(f"buffer_load_dwordx4 v{vDK if kind == 'K' else vDV}, {srd(sK if kind == 'K' else sV)}, s{sT0} offen nt lds", tag=(kind, b, t))

def dma_c(p, kind, t):
    p.e(f"s_add_u32 s{sT0}, s{sDB}, {t * 8192}")
    p.e(f"s_add_u32 m0, s{sDL}, {(t % 5) * SLOT + (0 if kind == 'K' else 2 * RING)}")
    for j in range(4):
        r = (vDK, vDV, vBA0, vBA1)[j] if kind == 'K' else vDV
        p.e(f"buffer_load_dwordx4 v{r}, {srd(sK if kind == 'K' else sV)}, s{sT0} offen offset:{j * 1024} nt lds", tag=(kind, 0, t))

def wq_load(p, s, buf):
    e = p.e
    th = []
    def pre():
        if s % 2 == 0:
            if s > 0:
                e(f"s_add_u32 s{sKOFF}, s{sKOFF}, {1 << 19}"); e(f"s_and_b32 s{sKOFF}, s{sKOFF}, {(1 << 22) - 1}")
            e(f"v_add_u32 v{vWA}, s{sKOFF}, v{vWOFF}")
        else:
            e(f"v_xor_b32 v{vWA}, {1 << 18}, v{vWA}")
    th.append(pre)
    for j in range(8):
        th.append(lambda j=j: e(f"buffer_load_dwordx4 {vr(buf + 4 * j, 4)}, v{vWA}, {srd(sWQ)}, {'0' if j == 0 else 's%d' % sJT[j]} offen"))
    return th

def wo_load(p, s, buf):
    e = p.e
    th = []
    def pre():
        e(f"s_add_u32 s{sT1}, s{sROT}, {s}"); e(f"s_and_b32 s{sT1}, s{sT1}, 7"); e(f"s_lshl_b32 s{sT4}, s{sT1}, 15"); e(f"s_add_u32 s{sT5}, s{sT4}, 8192")
    th.append(pre)
    for j in range(8):
        th.append(lambda j=j: e(f"buffer_load_dwordx4 {vr(buf + 4 * j, 4)}, v{vWOFF}, {srd(sWO)}, s{sT4 if j < 4 else sT5} offen offset:{(j % 4) * 1024}"))
    return th

def run(th):
    for t in th: t()

def perm_frag(p, raw, c, fr):
    for m in range(4):
        p.e(f"v_perm_b32 v{fr + m}, v{raw + 4 * (2 * m + 1) + c // 2}, v{raw + 4 * (2 * m) + c // 2}, s{sSELHI if c % 2 else sSELLO}")

def perm1(p, raw, c, fr, m):
    p.e(f"v_perm_b32 v{fr + m}, v{raw + 4 * (2 * m + 1) + c // 2}, v{raw + 4 * (2 * m) + c // 2}, s{sSELHI if c % 2 else sSELLO}")

ORDER = [(c, q) for c in range(6) for q in range(4)] + [(c, q) for q in range(4) for c in (6, 7)]
PERMS = {}
def _pp(gaps, d, c):
    for m, g in enumerate(gaps): PERMS.setdefault(g, []).append((d, c, m))
_pp([24, 25, 26, 27], 1, 0); PERMS.setdefault(30, []).append((1, 1, 0)); PERMS.setdefault(31, []).append((1, 1, 1))
PERMS.setdefault(0, []).append((0, 1, 2)); PERMS.setdefault(1, []).append((0, 1, 3))
_pp([2, 3, 4, 5], 0, 2); _pp([6, 7, 8, 9], 0, 3); _pp([10, 11, 12, 13], 0, 4); _pp([14, 15, 16, 17], 0, 5)
_pp([17, 18, 18, 19], 0, 6); _pp([19, 20, 21, 22], 0, 7)
LOADGAP = [23, 28, 29, 0, 2, 4, 6, 8, 10]

def proj(p, nks, bufs, load, bread, mid=None, late2=False):
    frag = lambda s, c: vFR + 4 * ((8 * s + c) % 3)
    def waitbuf(s):
        p.e(f"s_nop 0 ; waitbuf", touch=[('v', bufs[s % 3] + i) for i in range(32)])
    waitbuf(0)
    for m in range(4): perm1(p, bufs[0], 0, frag(0, 0), m)
    for m in range(2): perm1(p, bufs[0], 1, frag(0, 1), m)
    pend = {}
    if late2:
        for g, t in zip([0, 1, 3, 5, 7, 9, 11, 13, 15], load(p, 2, bufs[2])): pend[(0, g)] = t
    for s in range(nks):
        for m, (c, qt) in enumerate(ORDER):
            cin = "0" if s == 0 else vr(acc(c, qt), 4)
            if not ('m' in Opt.dbg and m % 4): p.e(f"v_mfma_f32_16x16x32_bf16 {vr(acc(c, qt), 4)}, {vr(frag(s, c), 4)}, {vr(vBF + 4 * qt, 4)}, {cin}")
            if m == 22 and mid: mid(s)
            if c == 7 and s + 1 < nks: bread(s + 1, qt)
            if m == 24 and s + 1 < nks: waitbuf(s + 1)
            for (d, cc, mm) in PERMS.get(m, []):
                if s + d < nks and not ('m' in Opt.dbg and m % 4): perm1(p, bufs[(s + d) % 3], cc, frag(s + d, cc), mm)
            if m == 23 and s + 3 < nks:
                th = load(p, s + 3, bufs[s % 3])
                for g, t in zip(LOADGAP, th): pend[(s if g >= 23 else s + 1, g)] = t
            if (s, m) in pend: pend.pop((s, m))()
    assert not pend

def phase1_P(p):
    e = p.e
    e(f"v_lshrrev_b32 v1, 4, v{vLANE}")
    e(f"v_and_b32 v2, 15, v{vLANE}")
    e(f"v_lshlrev_b32 v3, 4, v2")
    e(f"v_lshl_add_u32 v{vWOFF}, v1, 16, v3")
    e(f"s_lshr_b32 s{sT0}, s{sW1K}, 2")
    e(f"s_lshl_b32 s{sT1}, s{sCLS}, 18"); e(f"s_add_u32 s{sT0}, s{sT0}, s{sT1}")
    e(f"v_add_u32 v{vWOFF}, s{sT0}, v{vWOFF}")
    e(f"s_lshl_b32 s{sKOFF}, s{sROT}, 19")
    run(wq_load(p, 0, vRAW[0]))
    e(f"v_lshrrev_b32 v3, 1, v2")
    e(f"v_xor_b32 v3, v3, v1")
    e(f"v_lshlrev_b32 v3, 4, v3")
    e(f"v_lshl_add_u32 v{vBA0}, v2, 7, v3")
    e(f"s_lshl_b32 s{sT1}, s{sCLS}, 6"); e(f"v_xor_b32 v{vBA0}, s{sT1}, v{vBA0}")
    p.barrier('a')
    run(wq_load(p, 1, vRAW[1]))
    cur = [0]
    def bread(s, qt):
        c, half = s // 2, s % 2
        want = xslot(c)
        if qt == 0 and s > 0:
            e(f"v_xor_b32 v{vBA0}, 64, v{vBA0}")
            if not (0 <= want - cur[0] and want - cur[0] + 3 * 2048 <= 65535):
                d = want - cur[0]
                e(f"v_add_u32 v{vBA0}, {d & 0xffffffff}, v{vBA0}"); cur[0] = want
        e(f"ds_read_b128 {vr(vBF + 4 * qt, 4)}, v{vBA0} offset:{want - cur[0] + qt * 2048}")
    p.barrier('x0')
    stamp(p, 1)
    for qt in range(4): bread(0, qt)
    def mid(s):
        if s in Opt.pbars: p.barrier(f's{s}')
        if s == 3: stamp(p, 9)
        if s == 7: stamp(p, 8)
    proj(p, 16, vRAW, wq_load, bread, mid, late2=True)
    stamp(p, 2)
    e(f"v_lshlrev_b32 v{vBA0}, 4, v{vLANE}")
    e(f"s_mul_i32 s{sT0}, s{sWAVE}, {RING}")
    e(f"v_add_u32 v{vBA0}, s{sT0}, v{vBA0}")
    for b, dst in ((1, 160), (0, vQ)):
        for j in range(4):
            for ql in range(2):
                qt = 2 * b + ql
                for c in range(8): e(f"v_mul_f32 v{acc(c, qt) + j}, s{sSCALE}, v{acc(c, qt) + j}")
                for w in range(4):
                    e(f"v_cvt_pk_bf16_f32 v{dst + (4 * ql + j) * 4 + w}, v{acc(2 * w, qt) + j}, v{acc(2 * w + 1, qt) + j}")
        for j in range(4):
            for w in range(4):
                e(f"v_permlane16_swap_b32 v{dst + j * 4 + w}, v{dst + (4 + j) * 4 + w}")
        if b == 1:
            for s in range(8): e(f"ds_write_b128 v{vBA0}, {vr(dst + 4 * s, 4)} offset:{4 * SLOT + s * 1024}")
            p.barrier('q1')
    dma_addr_setup(p)

def phase1_L(p, sched, tag):
    e = p.e
    def grp(t):
        for kind in 'KV':
            for b in range(2): dma_tile(p, kind, b, t, (0, 1))
    def xch(c):
        e(f"s_add_u32 s{sT0}, s{sROT}, {c}"); e(f"s_and_b32 s{sT0}, s{sT0}, 7"); e(f"s_lshl_b32 s{sT0}, s{sT0}, 7")
        for i in range(2):
            e(f"s_add_u32 m0, s{sT1}, {xslot(c) + i * 1024}")
            e(f"buffer_load_dwordx4 v{1 + i}, {srd(sX)}, s{sT0} offen lds", tag=('x', c))
    def warm():
        if Opt.warm:
            e(f"v_and_b32 v3, 1, v{vLANE}"); e(f"v_lshlrev_b32 v3, 20, v3")
            e(f"buffer_load_dword v4, v3, {srd(sK)}, 0 offen"); e(f"buffer_load_dword v5, v3, {srd(sV)}, 0 offen")
            e(f"buffer_load_dword v6, off, {srd(sWO)}, 0")
            e(f"s_lshl_b32 s{sT0}, s{sGRP}, 19"); e(f"buffer_load_dword v7, off, {srd(sWS)}, s{sT0}")
            e(f"s_lshl_b32 s{sT0}, s{sBP}, 17"); e(f"buffer_load_dword v9, off, {srd(sOUT)}, s{sT0}")
        e(f"v_lshrrev_b32 v3, 3, v{vLANE}"); e(f"v_and_b32 v10, 7, v{vLANE}"); e(f"v_lshlrev_b32 v10, 2, v10"); e(f"v_lshl_add_u32 v10, v3, 8, v10")
        e(f"s_lshl_b32 s{sT0}, s{sW1K}, 18"); e(f"v_add_u32 v10, s{sT0}, v10")
        e(f"s_lshl_b32 s{sT0}, s{sGRP}, 11"); e(f"s_add_u32 s{sT0}, s{sT0}, {FLAGS}")
        e(f"buffer_load_dword v8, v10, {srd(sWS)}, s{sT0} offen sc1")
    def snap():
        e(f"s_mov_b32 s{sNON}, 0")
        e("s_nop 0", touch=[('v', 8)])
        p.label(f"L_snap_{tag}")
        e(f"s_add_u32 s{sNON}, s{sNON}, 1")
        e(f"v_cmp_eq_u32 vcc, s{sNON}, v8")
        e(f"s_cbranch_vccnz L_snap_{tag}")
        e(f"v_mov_b32 v8, s{sNON}")
        e(f"s_lshl_b32 s{sT0}, s{sG}, 8"); e(f"s_add_u32 s{sT0}, s{sT0}, s{sW1K}"); e(f"s_lshl_b32 s{sT2}, s{sGRP}, 2"); e(f"s_add_u32 s{sT0}, s{sT0}, s{sT2}")
        e(f"v_lshlrev_b32 v10, 8, v{vLANE}"); e(f"v_add_u32 v10, s{sT0}, v10")
        e(f"buffer_store_dword v8, v10, {srd(sDBG)}, 0 offen sc1")
    def at(pt):
        if pt == Opt.warmpt: warm()
        if pt == Opt.snappt: snap()
        for t in sched.get(pt, ""): grp(int(t))
    e(f"s_lshl_b32 s{sT1}, s{sW1K}, 1")
    for c in range(4): xch(c)
    at('a')
    p.barrier('a')
    p.wait_tags([('x', c) for c in range(4)])
    p.barrier('x0')
    stamp(p, 1)
    for c in range(4, 8): xch(c)
    at('x')
    for k in Opt.pbars:
        if k == 7: p.wait_tags([('x', c) for c in range(8)])
        p.barrier(f's{k}')
        if k == 3: stamp(p, 9)
        if k == 7: stamp(p, 8)
        if k == 15: stamp(p, 2)
        at(k)
    p.wait_tags([('K', 0, 0), ('K', 1, 0)])
    p.barrier('q1')
    for s in range(8): e(f"ds_read_b128 {vr(vQ + 4 * s, 4)}, v{vBA0} offset:{4 * SLOT + s * 1024}")
    at('q')

def phase1_L_pre(p):
    e = p.e
    e(f"v_lshrrev_b32 v1, 3, v{vLANE}")
    e(f"v_lshrrev_b32 v2, 4, v{vLANE}")
    e(f"v_and_b32 v3, 7, v{vLANE}")
    e("v_xor_b32 v2, v2, v3")
    e("v_lshlrev_b32 v2, 4, v2")
    e("v_lshl_add_u32 v1, v1, 10, v2")
    e(f"s_lshl_b32 s{sT0}, s{sW1K}, 4")
    e(f"v_add_u32 v1, s{sT0}, v1")
    e("v_xor_b32 v2, 64, v1")
    e("v_add_u32 v2, 8192, v2")
    dma_addr_setup(p)
    e(f"v_lshlrev_b32 v{vBA0}, 4, v{vLANE}")
    e(f"s_sub_u32 s{sT0}, s{sWAVE}, 4")
    e(f"s_mul_i32 s{sT0}, s{sT0}, {RING}")
    e(f"v_add_u32 v{vBA0}, s{sT0}, v{vBA0}")

def att_setup(p, b):
    e = p.e
    t0, t1, t2 = vTMP, vTMP + 1, vTMP + 2
    e(f"v_and_b32 v{t0}, 31, v{vLANE}")
    e(f"v_lshrrev_b32 v{t1}, 5, v{vLANE}")
    e(f"v_lshlrev_b32 v{t1}, 3, v{t1}")
    e(f"v_and_b32 v{t2}, 15, v{vLANE}")
    e(f"v_xor_b32 v{t1}, v{t1}, v{t2}")
    e(f"v_lshlrev_b32 v{t1}, 4, v{t1}")
    e(f"v_lshl_add_u32 v{t1}, v{t0}, 8, v{t1}")
    e(f"v_add_u32 v{vKA}, {b * RING}, v{t1}")
    for s in range(1, 8): e(f"v_xor_b32 v{vKA + s}, {16 * s}, v{vKA}")
    e(f"v_bfe_u32 v{t0}, v{vLANE}, 2, 2")
    e(f"v_lshrrev_b32 v{t1}, 5, v{vLANE}")
    e(f"v_lshl_add_u32 v{t1}, v{t1}, 2, v{t0}")
    e(f"v_lshlrev_b32 v{t1}, 8, v{t1}")
    e(f"v_lshl_add_u32 v{t1}, v{t0}, 6, v{t1}")
    e(f"v_bfe_u32 v{t0}, v{vLANE}, 4, 1")
    e(f"v_lshl_add_u32 v{t1}, v{t0}, 5, v{t1}")
    e(f"v_and_b32 v{t0}, 3, v{vLANE}")
    e(f"v_lshl_add_u32 v{t1}, v{t0}, 3, v{t1}")
    e(f"v_add_u32 v{vVA}, {(2 + b) * RING}, v{t1}")
    for t in range(1, 4): e(f"v_xor_b32 v{vVA + t}, {64 * t}, v{vVA}")
    e(f"v_bfe_u32 v{t0}, v{vLANE}, 5, 1")
    e(f"v_lshlrev_b32 v{t0}, 14, v{t0}")
    e(f"v_bfe_u32 v{t1}, v{vLANE}, 4, 1")
    e(f"v_lshl_add_u32 v{t0}, v{t1}, 12, v{t0}")
    e(f"v_and_b32 v{t1}, 15, v{vLANE}")
    e(f"v_lshl_add_u32 v{t0}, v{t1}, 4, v{t0}")
    e(f"s_lshr_b32 s{sT0}, s{sW1K}, 2")
    e(f"s_add_u32 s{sT0}, s{sT0}, {b * 262144}")
    e(f"v_add_u32 v{vWOFF}, s{sT0}, v{t0}")
    e(f"v_mov_b32 v{vBA1}, 0x400")
    if Opt.dmac:
        e(f"s_bfe_u32 s{sT0}, s{sWAVE}, 0x10001"); e(f"s_and_b32 s{sT1}, s{sWAVE}, 1"); e(f"s_lshl_b32 s{sT1}, s{sT1}, 12")
        e(f"s_lshl_b32 s{sDB}, s{sT0}, 20"); e(f"s_add_u32 s{sDB}, s{sDB}, s{sT1}")
        e(f"s_mul_i32 s{sDL}, s{sT0}, {RING}"); e(f"s_add_u32 s{sDL}, s{sDL}, s{sT1}")
        e(f"v_lshrrev_b32 v{t0}, 4, v{vLANE}"); e(f"v_and_b32 v{t1}, 15, v{vLANE}")
        if b == 0:
            e(f"v_xor_b32 v{t1}, v{t1}, v{t0}"); e(f"v_lshlrev_b32 v{t1}, 4, v{t1}"); e(f"v_lshl_add_u32 v{vDK}, v{t0}, 8, v{t1}")
            for j, r in enumerate((vDV, vBA0, vBA1)): e(f"v_xor_b32 v{r}, {64 * (j + 1)}, v{vDK}")
        else:
            e(f"v_lshlrev_b32 v{t2}, 2, v{t0}"); e(f"v_xor_b32 v{t1}, v{t1}, v{t2}"); e(f"v_lshlrev_b32 v{t1}, 4, v{t1}"); e(f"v_lshl_add_u32 v{vDV}, v{t0}, 8, v{t1}")

def kread(p, t, s): p.e(f"ds_read_b128 {vr(vKV + 4 * s, 4)}, v{vKA + s} offset:{(t % 5) * SLOT}")
def vread(p, t, f, halves=(0, 1)):
    u, dt = f // 4, f % 4
    for half in halves:
        p.e(f"ds_read_b64_tr_b16 {vr(vKV + 4 * f + 2 * half, 2)}, v{vVA + dt} offset:{(t % 5) * SLOT + (16 * u + 8 * half) * 256}")

def rowmax(p, dst, tmp):
    e = p.e
    e(f"v_max3_f32 v{dst}, v{vS}, v{vS+1}, v{vS+2}")
    for i in range(3, 15, 2): e(f"v_max3_f32 v{dst}, v{dst}, v{vS+i}, v{vS+i+1}")
    e(f"v_max_f32 v{dst}, v{dst}, v{vS+15}")
    e(f"v_mov_b32 v{tmp}, v{dst}")
    e(f"v_permlane32_swap_b32 v{dst}, v{tmp}")
    e(f"v_max_f32 v{dst}, v{dst}, v{tmp}")

vNON = vBA0
NONCE_LDS = 152 * 1024
def nonce_load(p):
    e = p.e
    e(f"s_lshl_b32 s{sT0}, s{sGRP}, 2"); e(f"s_add_u32 s{sT0}, s{sT0}, s{sW1K}")
    e(f"v_mov_b32 v{vBA1}, s{sT0}")
    e(f"buffer_load_dword v{vNON}, v{vBA1}, {srd(sDBG)}, 0 offen sc1")
def nonce_get(p):
    e = p.e
    e(f"v_readfirstlane_b32 s{sNON}, v{vNON}")
    e(f"s_mov_b32 s{sT4}, {Opt.pollmax}")
    e(f"s_cmp_lg_u32 s{sWAVE}, 4")
    e(f"s_cbranch_scc1 L_non_ok")
    p.label("L_non")
    e(f"s_cmp_lg_u32 s{sNON}, 0")
    e(f"s_cbranch_scc1 L_non_ok")
    e(f"s_sub_u32 s{sT4}, s{sT4}, 1")
    e(f"s_cbranch_scc1 L_non_ok")
    p.raw(f"buffer_load_dword v{vNON}, v{vBA1}, {srd(sDBG)}, 0 offen sc1")
    p.raw("s_waitcnt vmcnt(0)")
    p.raw(f"v_readfirstlane_b32 s{sNON}, v{vNON}")
    p.raw("s_nop 1")
    e("s_branch L_non")
    p.label("L_non_ok")

def attention(p, role):
    e = p.e
    b = 0 if role == 'P' else 1
    half = (0,) if role == 'P' else (1,)
    late = (role == 'L' and Opt.stagger)
    att_setup(p, b)
    for s in range(8): kread(p, 0, s)
    plan = [x.split() for x in Opt.att.split(",")]
    assert len(plan) == 16
    wob = [vRAW[1], vRAW[2], vRAW[0]]
    stream = [('K', 4, 0), ('K', 4, 1)]
    for n in range(4, 16):
        stream += [('V', n, 0), ('V', n, 1)] + ([('K', n + 1, 0), ('K', n + 1, 1)] if n < 15 else [])
    wdone = []
    def items(t, pos):
        for it in plan[t]:
            w = 'post'
            if it[0] in '<^$': w = {'<': 'pre', '^': 'sm', '$': 'pv'}[it[0]]; it = it[1:]
            if w != pos: continue
            lim = t + (3 if w == 'pre' else 4)
            if it[0] in 'UVK':
                n = int(it[1:])
                lst = {'U': (('V', n), ('K', n + 1)), 'V': (('V', n),), 'K': (('K', n),)}[it[0]]
                for kind, tt in lst:
                    assert (tt <= lim if kind == 'V' else tt <= lim + 1), (t, it)
                    assert not (t == 0 and w == 'pre')
                    if tt < 16:
                        if Opt.dmac:
                            if (kind == 'K') == (role == 'P'): dma_c(p, kind, tt)
                        else:
                            for bb in range(2): dma_tile(p, kind, bb, tt, half)
            elif it[0] == 'T':
                for _ in range(int(it[1:])):
                    kind, tt, bb = stream.pop(0)
                    assert (tt <= lim if kind == 'V' else tt <= lim + 1), (t, it, kind, tt)
                    assert (tt > t if kind == 'V' else tt > t + 1), (t, it, kind, tt)
                    dma_tile(p, kind, bb, tt, half)
            elif it == 'W':
                e(f"s_lshl_b32 s{sT0}, s{sBP}, 15"); e(f"s_lshl_b32 s{sT1}, s{sWAVE}, 12"); e(f"s_add_u32 s{sT0}, s{sT0}, s{sT1}")
                e(f"v_lshlrev_b32 v{vBA0}, 4, v{vLANE}")
                for j in range(4): e(f"buffer_load_dwordx4 {vr(vRAW[2] + 4 * j, 4)}, v{vBA0}, {srd(sWO)}, s{sT0} offen offset:{j * 1024}")
            elif it == 'N':
                if role == 'L': nonce_load(p)
            elif it[0] == 'w':
                sw = int(it[1])
                j0, j1 = (int(it[2]), int(it[3])) if len(it) > 2 else (0, 8)
                assert sw < 2 or (t == 15 and w != 'pre' and not (late and w == 'post'))
                th = wo_load(p, sw, wob[sw])
                run([th[0]] + th[1 + j0:1 + j1])
                wdone.extend((sw, j) for j in range(j0, j1))
            else: raise ValueError(it)
    def sync(t):
        items(t, 'pre')
        need = [('V', bb, t) for bb in range(2)] + [('K', bb, t + 1) for bb in range(2)]
        p.wait_tags(need)
        p.barrier(f'B{t}')
        sstamp(p, t)
        items(t, 'post')
        sstamp(p, t + 0.5)
    for t in range(16):
        if t == 0: stamp(p, 10)
        if t in (4, 8, 12) and 'x' not in Opt.dbg: stamp(p, 10 + t // 4)
        fstamp(p, t, 0)
        if late: sync(t)
        if late: fstamp(p, t, 1)
        for s in range(8):
            cin = ("0" if t == 0 else vr(vNM, 16)) if s == 0 else vr(vS, 16)
            e(f"v_mfma_f32_32x32x16_bf16 {vr(vS, 16)}, {vr(vKV + 4 * s, 4)}, {vr(vQ + 4 * s, 4)}, {cin}")
        fstamp(p, t, 1 + late)
        if not late: sync(t)
        if not late: fstamp(p, t, 2)
        vq = [(f, h) for f in range(8) for h in range(2)]
        def vnext(n=1):
            for _ in range(n):
                if vq:
                    f, h = vq.pop(0); vread(p, t, f, (h,))
        vnext(16 if t == 0 or not Opt.vint else 4 if late else 2)
        if t == 0:
            rowmax(p, vTMP, vTMP + 1)
            for i in range(16): e(f"v_sub_f32 v{vS+i}, v{vS+i}, v{vTMP}")
            for i in range(16): e(f"v_sub_f32 v{vNM+i}, 0, v{vTMP}")
        else:
            e(f"s_mov_b32 s{sTILE}, {t}")
            p.label(f"SM_{role}_{t}")
        fstamp(p, t, 3)
        for i in range(0, 16, 2):
            a = vTMP + (i % 4)
            e(f"v_exp_f32 v{a}, v{vS+i}")
            vnext()
            e(f"v_exp_f32 v{a+1}, v{vS+i+1}")
            vnext()
            if i >= 2:
                pa = vTMP + ((i - 2) % 4)
                e(f"v_cvt_pk_bf16_f32 v{vP + (i - 2) // 2}, v{pa}, v{pa+1}")
            if i == 0: e(f"v_add_f32 v{vTS}, v{a}, v{a+1}")
            else:
                e(f"v_add_f32 v{vTS}, v{vTS}, v{a}"); e(f"v_add_f32 v{vTS}, v{vTS}, v{a+1}")
        e(f"v_cvt_pk_bf16_f32 v{vP + 7}, v{vTMP+2}, v{vTMP+3}")
        if t == 0: e(f"v_mov_b32 v{vL}, v{vTS}")
        else:
            e(f"v_cmp_lt_f32 vcc, s{sTHR}, v{vTS}")
            e(f"s_cbranch_vccnz FIX_{role}")
            e(f"v_add_f32 v{vL}, v{vL}, v{vTS}")
        fstamp(p, t, 4)
        items(t, 'sm')
        for f in range(8):
            if f == 1: fstamp(p, t, 5)
            u, dt = f // 4, f % 4
            cin = "0" if (t == 0 and u == 0) else vr(vO + 16 * dt, 16)
            e(f"v_mfma_f32_32x32x16_bf16 {vr(vO + 16 * dt, 16)}, {vr(vKV + 4 * f, 4)}, {vr(vP + 4 * u, 4)}, {cin}")
            if t < 15: kread(p, t + 1, f)
        items(t, 'pv')
    assert sorted(wdone) == [(a, b) for a in range(3) for b in range(8)]
    assert len(stream) in (0, 48)
    stamp(p, 3)
    sstamp(p, 16)
    if role == 'L': nonce_get(p)
    e(f"v_mov_b32 v{vTMP}, v{vL}")
    e(f"v_permlane32_swap_b32 v{vL}, v{vTMP}")
    e(f"v_add_f32 v{vL}, v{vL}, v{vTMP}")
    e(f"v_rcp_f32 v{vL}, v{vL}")
    t0, t1 = vTMP, vTMP + 1
    e(f"v_and_b32 v{t0}, 15, v{vLANE}"); e(f"v_lshlrev_b32 v{t0}, 4, v{t0}")
    e(f"v_bfe_u32 v{t1}, v{vLANE}, 4, 1"); e(f"v_lshl_add_u32 v{t0}, v{t1}, 10, v{t0}")
    e(f"v_lshrrev_b32 v{t1}, 5, v{vLANE}"); e(f"v_lshl_add_u32 v{t0}, v{t1}, 8, v{t0}")
    e(f"s_lshl_b32 s{sT0}, s{sW1K}, 4"); e(f"s_add_u32 s{sT0}, s{sT0}, {OBUF + b * 2048}")
    e(f"v_add_u32 v{vBA1}, s{sT0}, v{t0}")
    for dt in range(4):
        for i in range(16): e(f"v_mul_f32 v{vO + 16 * dt + i}, v{vO + 16 * dt + i}, v{vL}")
        for w in range(8): e(f"v_cvt_pk_bf16_f32 v{vKV + 8 * dt + w}, v{vO + 16 * dt + 2 * w}, v{vO + 16 * dt + 2 * w + 1}")
        for mm in range(2): e(f"ds_write_b128 v{vBA1}, {vr(vKV + 8 * dt + 4 * mm, 4)} offset:{dt * 4096 + mm * 512}")
    if role == 'L':
        e(f"s_add_u32 s{sT0}, s{sW1K}, {NONCE_LDS}")
        e(f"v_mov_b32 v{vTMP}, s{sT0}"); e(f"v_mov_b32 v{vTMP + 2}, s{sNON}")
        e(f"ds_write_b32 v{vTMP}, v{vTMP + 2}")
    p.barrier('o')

def fix(p, role):
    e = p.e
    p.label(f"FIX_{role}")
    p.settle()
    rowmax(p, vTMP, vTMP + 1)
    e(f"v_max_f32 v{vTMP}, 0, v{vTMP}")
    e(f"v_exp_f32 v{vTMP+1}, -v{vTMP}")
    for i in range(16): e(f"v_sub_f32 v{vS+i}, v{vS+i}, v{vTMP}")
    for i in range(16): e(f"v_sub_f32 v{vNM+i}, v{vNM+i}, v{vTMP}")
    for i in range(64): e(f"v_mul_f32 v{vO+i}, v{vO+i}, v{vTMP+1}")
    e(f"v_mul_f32 v{vL}, v{vL}, v{vTMP+1}")
    p.settle()
    for t in range(1, 15):
        e(f"s_cmp_eq_u32 s{sTILE}, {t}")
        e(f"s_cbranch_scc1 SM_{role}_{t}")
    e(f"s_branch SM_{role}_15")

def outproj(p, role):
    e = p.e
    kh = 0 if role == 'P' else 1
    bufs = [vRAW[1], vRAW[2], vRAW[0]]
    e(f"v_lshlrev_b32 v{vBA0}, 4, v{vLANE}")
    def bread(s, qt):
        if qt == 0:
            e(f"s_add_u32 s{sT2}, s{sROT}, {s}"); e(f"s_and_b32 s{sT2}, s{sT2}, 7"); e(f"s_lshl_b32 s{sT2}, s{sT2}, 12")
            e(f"v_add_u32 v{vBA1}, s{sT2}, v{vBA0}")
        e(f"ds_read_b128 {vr(vBF + 4 * qt, 4)}, v{vBA1} offset:{OBUF + kh * 32768 + qt * 1024}")
    for qt in range(4): bread(0, qt)
    proj(p, 8, bufs, wo_load, bread)
    stamp(p, 4)
    give = [2, 3] if kh == 0 else [0, 1]
    keep = [0, 1] if kh == 0 else [2, 3]
    e(f"s_lshl_b32 s{sT0}, s{sW1K}, 3")
    e(f"s_add_u32 s{sT0}, s{sT0}, {EXBUF}")
    e(f"v_add_u32 v{vBA1}, s{sT0}, v{vBA0}")
    for ql in range(2):
        for j in range(4):
            r = 128 + (ql * 4 + j) * 4
            for w in range(4): e(f"v_cvt_pk_bf16_f32 v{r + w}, v{acc(2 * w, give[ql]) + j}, v{acc(2 * w + 1, give[ql]) + j}")
            e(f"ds_write_b128 v{vBA1}, {vr(r, 4)} offset:{kh * 32768 + (ql * 4 + j) * 1024}")
    p.barrier('ex')
    for i in range(8): e(f"ds_read_b128 {vr(160 + 4 * i, 4)}, v{vBA1} offset:{(1 - kh) * 32768 + i * 1024}")
    e(f"v_mov_b32 v128, {NONCE_LDS}")
    e(f"ds_read_b32 v129, v128")
    e(f"v_lshrrev_b32 v131, 4, v{vLANE}"); e(f"v_and_b32 v130, 15, v{vLANE}"); e(f"v_lshlrev_b32 v130, 4, v130"); e(f"v_lshl_add_u32 v130, v131, 16, v130")
    e(f"s_lshl_b32 s{sT0}, s{sGRP}, 19"); e(f"s_lshl_b32 s{sT1}, s{sG}, 10"); e(f"s_add_u32 s{sT0}, s{sT0}, s{sT1}")
    e(f"s_lshl_b32 s{sT1}, s{sWAVE}, 13"); e(f"s_add_u32 s{sT0}, s{sT0}, s{sT1}")
    for ql in range(2):
        for j in range(4):
            i = ql * 4 + j
            for c in range(8):
                e(f"v_dot2c_f32_bf16 v{acc(c, keep[ql]) + j}, s{sHI1 if c % 2 else sLO1}, v{160 + 4 * i + c // 2}")
            for w in range(4): e(f"v_cvt_pk_bf16_f32 v{192 + 4 * i + w}, v{acc(2 * w, keep[ql]) + j}, v{acc(2 * w + 1, keep[ql]) + j}")
            e(f"buffer_store_dwordx4 {vr(192 + 4 * i, 4)}, v130, {srd(sWS)}, s{sT0} offen offset:{j * 256} sc1")
            if i == 3: e(f"s_add_u32 s{sT0}, s{sT0}, {4 * 65536}")
    e(f"s_lshl_b32 s{sT2}, s{sGRP}, 3"); e(f"s_add_u32 s{sT2}, s{sT2}, s{sWAVE}"); e(f"s_lshl_b32 s{sT2}, s{sT2}, 8")
    e(f"s_add_u32 s{sT2}, s{sT2}, {FLAGS}")
    e(f"s_lshl_b32 s{sT3}, s{sG}, 2"); e(f"s_add_u32 s{sT3}, s{sT3}, s{sT2}")
    e(f"v_lshlrev_b32 v128, 2, v{vLANE}")
    p.wait_lg(0)
    p.wait_vm(0)
    e(f"s_mov_b64 exec, 1")
    e(f"buffer_store_dword v129, v128, {srd(sWS)}, s{sT3} offen sc1")
    stamp(p, 5)

FLAGS = 16 * 1024 * 1024
def reduce_out(p, role):
    e = p.e
    kh = 0 if role == 'P' else 1
    e(f"s_mov_b64 exec, 0xff")
    e(f"s_mov_b32 s{sT4}, {Opt.pollmax}")
    p.label(f"L_poll_{role}")
    e(f"buffer_load_dword v130, v128, {srd(sWS)}, s{sT2} offen sc1")
    e(f"s_sub_u32 s{sT4}, s{sT4}, 1")
    e(f"s_cbranch_scc1 L_pollx_{role}")
    p.wait_vm(0)
    e(f"v_cmp_ne_u32 vcc, v130, v129")
    e(f"s_cbranch_vccz L_pollx_{role}")
    if Opt.sleep: e(f"s_sleep {Opt.sleep}")
    e(f"s_branch L_poll_{role}")
    p.label(f"L_pollx_{role}")
    e(f"s_mov_b64 exec, -1")
    stamp(p, 6)
    e(f"s_lshl_b32 s{sT0}, s{sGRP}, 19"); e(f"s_lshl_b32 s{sT1}, s{sG}, 16"); e(f"s_add_u32 s{sT0}, s{sT0}, s{sT1}")
    e(f"s_lshl_b32 s{sT1}, s{sWAVE}, 13"); e(f"s_add_u32 s{sT0}, s{sT0}, s{sT1}")
    e(f"s_add_u32 s{sT1}, s{sT0}, 4096")
    for g in range(8):
        e(f"buffer_load_dwordx4 {vr(4 * g, 4)}, v{vBA0}, {srd(sWS)}, s{sT0 if g < 4 else sT1} offen offset:{(g % 4) * 1024} sc1")
    e(f"v_and_b32 v48, 15, v{vLANE}"); e(f"v_lshlrev_b32 v48, 11, v48")
    e(f"v_lshrrev_b32 v49, 4, v{vLANE}"); e(f"v_lshl_add_u32 v48, v49, 4, v48")
    e(f"s_lshl_b32 s{sT0}, s{sBP}, 17"); e(f"s_add_u32 s{sT0}, s{sT0}, {kh * 65536}")
    e(f"s_lshr_b32 s{sT1}, s{sG}, 2"); e(f"s_lshl_b32 s{sT1}, s{sT1}, 15"); e(f"s_add_u32 s{sT0}, s{sT0}, s{sT1}")
    e(f"s_lshl_b32 s{sT1}, s{sP}, 10"); e(f"s_add_u32 s{sT0}, s{sT0}, s{sT1}")
    e(f"s_lshr_b32 s{sT1}, s{sW1K}, 2"); e(f"s_add_u32 s{sT0}, s{sT0}, s{sT1}")
    e(f"s_and_b32 s{sT1}, s{sG}, 3"); e(f"s_lshl_b32 s{sT1}, s{sT1}, 6"); e(f"s_add_u32 s{sT0}, s{sT0}, s{sT1}")
    for c in range(8):
        if c % 2: e(f"v_and_b32 v{32 + c}, 0xffff0000, v{c // 2}")
        else: e(f"v_lshlrev_b32 v{32 + c}, 16, v{c // 2}")
    for g in range(1, 8):
        for c in range(8): e(f"v_dot2c_f32_bf16 v{32 + c}, s{sHI1 if c % 2 else sLO1}, v{4 * g + c // 2}")
    for w in range(4): e(f"v_cvt_pk_bf16_f32 v{40 + w}, v{32 + 2 * w}, v{33 + 2 * w}")
    e(f"buffer_store_dwordx4 v[40:43], v48, {srd(sOUT)}, s{sT0} offen")
    if Opt.stamps:
        p.wait_vm(0)
        stamp(p, 7)
        e(f"s_memtime s[{sST+30}:{sST+31}]")
        p.wait_lg(0)
        e(f"s_lshl_b32 s{sT0}, s2, 3"); e(f"s_add_u32 s{sT0}, s{sT0}, s{sWAVE}"); e(f"s_lshl_b32 s{sT0}, s{sT0}, 6")
        e(f"s_add_u32 s{sT0}, s{sT0}, {128 * 1024 * 1024}")
        for i in range(16): e(f"v_mov_b32 v{i}, s{sST + 2 * i}")
        e("v_mov_b32 v16, 0")
        e("s_mov_b64 exec, 1")
        for i in range(4): e(f"buffer_store_dwordx4 v[{4*i}:{4*i+3}], v16, {srd(sWS)}, s{sT0} offen offset:{16*i}")
    e("s_endpgm")

def build():
    p0 = Prog()
    prologue(p0)
    p0.e(f"s_cmp_ge_u32 s{sWAVE}, 4")
    p0.e("s_cbranch_scc1 L_role")
    P = p0.fork(); L = p0.fork()
    phase1_P(P); attention(P, 'P'); outproj(P, 'P'); reduce_out(P, 'P')
    L.label("L_role")
    phase1_L_pre(L)
    L.e(f"s_cmp_eq_u32 s{sCLS}, 1")
    L.e("s_cbranch_scc1 L_clsB")
    LA = L.fork(); LB = L.fork()
    phase1_L(LA, Opt.kvA, 'A')
    LA.e("s_branch L_att")
    LB.label("L_clsB")
    phase1_L(LB, Opt.kvB, 'B')
    L2 = LA.merge(LB)
    L2.label("L_att")
    attention(L2, 'L'); outproj(L2, 'L'); reduce_out(L2, 'L')
    L.out += LA.out + LB.out + L2.out; L.bars = L2.bars; L.nins += LA.nins + LB.nins + L2.nins
    assert P.bars == L.bars, (P.bars, L.bars)
    F = Prog(); fix(F, 'P'); fix(F, 'L')
    F.label("L_end"); F.e("s_endpgm")
    hdr = open("cdna_kernels/" + NAME + ".s.ref").read().split("; Override")[0]
    s = hdr + "; @launch grid=(256,1,1) block=(512,1,1) lds=163840\n" + HEADER
    s += f".globl {KN}\n.p2align 8\n.type {KN},@function\n{KN}:\n"
    s += p0.text() + P.text() + L.text() + F.text()
    s += kernel_desc(KN, 256, 256, 102).replace(".text\n", "")
    print("instrs", p0.nins, P.nins, L.nins, "nop states", P.nops, L.nops, file=sys.stderr)
    return s

if __name__ == "__main__":
    out = sys.argv[1]
    for a in sys.argv[2:]:
        k, v = a.split("=")
        setattr(Opt, k, eval(v))
    open(out, "w").write(build())
    assemble(out, out.replace(".s", ".co"), KN)
```

```python
import re

REG = re.compile(r'^(-|\|)?([vsa])(\d+)\|?$')
RNG = re.compile(r'^(-)?([vsa])\[(\d+):(\d+)\]$')

def regs_of(tok):
    tok = tok.strip()
    m = REG.match(tok)
    if m: return [(m.group(2), int(m.group(3)))]
    m = RNG.match(tok)
    if m: return [(m.group(2), i) for i in range(int(m.group(3)), int(m.group(4)) + 1)]
    if tok == 'vcc': return [('s', 106), ('s', 107)]
    if tok == 'm0': return [('s', 124)]
    if tok == 'exec': return [('s', 126), ('s', 127)]
    return []

TRANS = ('v_exp_', 'v_log_', 'v_rcp_', 'v_rsq_', 'v_sqrt_', 'v_sin_', 'v_cos_')

class Ins:
    __slots__ = ('text', 'op', 'kind', 'wr', 'rd', 'states', 'passes', 'srcc', 'srcab', 'wide', 'dma', 'D')
    def __init__(self, text):
        self.text = text
        t = text.split(';')[0].strip()
        parts = t.split(None, 1)
        op = parts[0]; self.op = op
        rest = parts[1] if len(parts) > 1 else ''
        ops = [o.strip() for o in rest.split(',')] if rest else []
        mods = []
        if ops:
            sp = ops[-1].split()
            ops[-1] = sp[0] if sp else ''
            mods = sp[1:]
        R = [regs_of(o) for o in ops]
        flat = lambda L: set(x for r in L for x in r)
        self.states = 1; self.passes = 0; self.srcc = set(); self.srcab = set(); self.wide = False; self.dma = False; self.D = None
        if op.startswith('v_mfma'):
            self.kind = 'mfma'; self.wr = set(R[0]); self.rd = flat(R[1:]); self.srcc = set(R[3]); self.srcab = flat(R[1:3])
            self.passes = 8 if '32x32' in op else 4; self.D = tuple(R[0])
        elif op.startswith('v_permlane') and 'swap' in op:
            self.kind = 'valu'; self.wr = flat(R); self.rd = flat(R)
        elif op.startswith('v_'):
            self.kind = 'valu'; self.wr = set(R[0]) if R else set(); self.rd = flat(R[1:])
            if op.startswith(('v_dot2c', 'v_fmac', 'v_mac')): self.rd |= self.wr
            if op.startswith('v_cndmask') and len(ops) == 3: self.rd |= set(regs_of('vcc'))
        elif op.startswith('ds_read'):
            self.kind = 'ds'; self.wr = set(R[0]); self.rd = flat(R[1:])
        elif op.startswith('ds_'):
            self.kind = 'ds'; self.wr = set(); self.rd = flat(R)
        elif op.startswith('buffer_load'):
            self.kind = 'vmem'
            if 'lds' in mods:
                self.wr = set(); self.rd = flat(R) | set(regs_of('m0')); self.dma = True
            else:
                self.wr = set(R[0]); self.rd = flat(R[1:])
        elif op.startswith('buffer_atomic'):
            self.kind = 'vmem'; self.rd = flat(R); self.wr = set(R[0]) if 'sc0' in mods else set()
        elif op.startswith('buffer_'):
            self.kind = 'vmem'; self.wr = set(); self.rd = flat(R)
            if 'x4' in op or 'x3' in op: self.wide = True; self.D = tuple(R[0])
        elif op.startswith(('s_load', 's_memrealtime', 's_memtime')):
            self.kind = 'smem'; self.wr = set(R[0]); self.rd = flat(R[1:])
        elif op == 's_nop':
            self.kind = 'nop'; self.wr = set(); self.rd = set(); self.states = int(ops[0]) + 1
        elif op.startswith(('s_cmp', 's_waitcnt', 's_barrier', 's_cbranch', 's_branch', 's_sleep', 's_setprio', 's_endpgm', 's_bitcmp')):
            self.kind = 'sctl'; self.wr = set(); self.rd = flat(R)
            if op.startswith('s_cbranch_vcc'): self.rd |= set(regs_of('vcc'))
        elif op.startswith('s_'):
            self.kind = 'salu'; self.wr = set(R[0]); self.rd = flat(R[1:])
            if 'saveexec' in op: self.wr |= set(regs_of('exec'))
        else:
            raise ValueError('unknown op ' + text)

def vonly(s): return set(x for x in s if x[0] in 'va')
def sonly(s): return set(x for x in s if x[0] == 's')

def need(J, I):
    n = 0
    if J.kind == 'valu':
        jv = vonly(J.wr); js = sonly(J.wr)
        if I.kind == 'mfma' and jv & I.rd: n = max(n, 3 if J.op.startswith('v_dot') else 2)
        if I.op.startswith('v_permlane') and jv & I.rd: n = max(n, 2)
        if I.op.endswith('_dpp') and jv & (I.rd | I.wr): n = max(n, 2)
        if I.op.startswith(('v_readfirstlane', 'v_readlane')) and jv & I.rd: n = max(n, 1)
        if J.op.startswith(TRANS) and I.kind in ('valu', 'ds', 'vmem') and jv & (I.rd | I.wr): n = max(n, 1)
        if J.op.startswith('v_dot'):
            if jv & (I.rd | I.wr):
                same_c = (I.op == J.op and I.wr == J.wr and not (jv & (I.rd - I.wr)))
                if not same_c: n = max(n, 3)
        if js:
            if I.kind == 'vmem' and js & I.rd: n = max(n, 5)
            if I.kind == 'valu' and js & I.rd: n = max(n, 2)
            if I.kind in ('salu', 'sctl') and js & I.rd: n = max(n, 1)
            if ('s', 126) in js and I.kind == 'mfma': n = max(n, 4)
    if J.kind == 'mfma':
        big = J.passes == 8
        if I.kind == 'mfma':
            if J.wr & I.srcab: n = max(n, 12 if big else 8)
            if J.wr & I.srcc:
                if not (J.wr == I.srcc and J.passes == I.passes): n = max(n, 10 if big else 6)
            elif J.wr & I.wr: n = max(n, 10 if big else 6)
        elif I.kind in ('valu', 'ds', 'vmem'):
            if J.wr & (I.rd | I.wr): n = max(n, 12 if big else 8)
            if J.srcc & I.wr: n = max(n, 7 if big else 3)
    if J.kind == 'salu' and ('s', 124) in J.wr and I.dma: n = max(n, 1)
    if J.kind == 'salu' and ('s', 126) in J.wr and I.kind in ('valu', 'mfma', 'ds', 'vmem'): n = max(n, 0)
    if J.kind == 'vmem' and J.wide and set(J.D) & I.wr: n = max(n, 2)
    if J.kind == 'ds' and not J.wr and '128' in J.op and vonly(J.rd) & I.wr and I.kind == 'valu': n = max(n, 2)
    return n

class Prog:
    def __init__(self):
        self.out = []
        self.hist = []
        self.vm = []
        self.lg = []
        self.sm = []
        self.bars = []
        self.nins = 0
        self.nops = 0
    def fork(self):
        p = Prog(); p.hist = list(self.hist); p.vm = [list(e) for e in self.vm]; p.lg = [list(e) for e in self.lg]
        p.sm = list(self.sm); p.bars = list(self.bars)
        return p
    def merge(self, other):
        p = self.fork()
        assert self.bars == other.bars, (self.bars, other.bars)
        for name in ('vm', 'lg'):
            a = getattr(self, name); b = getattr(other, name)
            n = max(len(a), len(b)); out = []
            for k in range(n):
                regs = set(); tags = set()
                for l in (a, b):
                    i = len(l) - n + k
                    if i >= 0:
                        regs |= l[i][0]
                        tags |= (l[i][1] if isinstance(l[i][1], set) else {l[i][1]})
                out.append([regs, tags])
            setattr(p, name, out)
        p.sm = list(set(self.sm) | set(other.sm))
        p.hist = []
        return p
    def raw(self, text): self.out.append(text)
    def label(self, name): self.out.append(name + ':')
    def comment(self, c): self.out.append('; ' + c)
    def _push(self, I):
        d = 0; req = 0
        for J in reversed(self.hist[-24:]):
            r = need(J, I) - d
            if r > req: req = r
            d += J.states
            if d >= 20: break
        while req > 0:
            k = min(req, 16)
            N = Ins(f's_nop {k-1}'); self.hist.append(N); self.out.append(N.text); req -= k; self.nops += k
        self.hist.append(I); self.out.append(I.text); self.nins += 1
        if len(self.hist) > 64: self.hist = self.hist[-32:]
    def _wait(self, vm=None, lg=None):
        t = []
        if vm is not None and vm < len(self.vm):
            vm = min(vm, 63); t.append(f'vmcnt({vm})'); self.vm = self.vm[len(self.vm) - vm:] if vm else []
        if lg is not None and (lg < len(self.lg) or (lg == 0 and self.sm)):
            lg = min(lg, 15)
            if self.sm: lg = 0; self.sm = []
            t.append(f'lgkmcnt({lg})'); self.lg = self.lg[len(self.lg) - lg:] if lg else []
        if t: self._push(Ins('s_waitcnt ' + ' '.join(t)))
    def e(self, text, tag=None, touch=None):
        I = Ins(text)
        only_wait = touch is not None
        touch = (I.rd | I.wr) if touch is None else set(touch)
        vmw = None; lgw = None
        for i, en in enumerate(self.vm):
            if en[0] & touch: vmw = len(self.vm) - 1 - i
        for i, en in enumerate(self.lg):
            if en[0] & touch: lgw = len(self.lg) - 1 - i
        if any(r in touch for r in self.sm): lgw = 0
        self._wait(vmw, lgw)
        if only_wait: return None
        if I.kind == 'vmem' and len(self.vm) >= 63: self._wait(vm=62)
        self._push(I)
        if I.kind == 'vmem': self.vm.append([set(I.wr), {tag}])
        elif I.kind == 'ds': self.lg.append([set(I.wr), tag])
        elif I.kind == 'smem': self.sm += list(I.wr)
        return I
    def wait_tags(self, tags):
        w = None
        for i, en in enumerate(self.vm):
            if en[1] & set(tags): w = len(self.vm) - 1 - i
        self._wait(vm=w)
    def wait_vm(self, n=0): self._wait(vm=n)
    def wait_lg(self, n=0): self._wait(lg=n)
    def barrier(self, name, lazy=False):
        if lazy:
            w = None
            for i, en in enumerate(self.lg):
                if not en[0]: w = len(self.lg) - 1 - i
            self._wait(lg=w)
        else: self._wait(lg=0)
        self.bars.append(name)
        self.e(f's_barrier ; {name}')
    def settle(self):
        self.e('s_nop 15')
    def text(self): return '\n'.join(self.out) + '\n'
```

```python
import sys, math, struct
from asmdsl import Prog
from common import *

NAME = "concat_heads__gqa_block_cached__gqa_block_cached__near_ridge"
KN = NAME + "_kernel"
def f2u(x): return struct.unpack('<I', struct.pack('<f', x))[0]

class Opt:
    stamps = False
    thr = 2.0 ** 14
    sleep = 2
    dbg = ""
    NB = 3
    jt = 6
    cls = ["i:x0 x1 x2 x3 w C w w|q0:x4 x5 x6 x7|q12:K0 K1 V0|q13:K2|q14:V1|q15:K3|p1:V2|p2:V3|t0:K4 K5 V4|t1:K6 V5|t2:K7 V6|t3:K8 V7|t4:K9 V8|t5:K10 V9",
           "i:x0 x1 x2 x3 w C K0 K1 V0 K2 V1 V2 lK4a lK5b lV4c w w|q0:x4 x5 x6 x7|q12:K3 V3 lK6d|q14:lV5e|p1:lK7f|t0:dK4 dV4 dK5|t1:dK6 dV5|t2:dK7 V6|t3:K8 V7|t4:K9 V8|t5:K10 V9",
           "i:x0 x1 x2 x3 w C K0 K1 V0 w w|q0:x4 x5 x6 x7|q12:K2 V1 K3|q13:V2|q14:V3|q15:lK4a|p1:lK5b|p2:lV4c|t0:dK4 dK5 dV4 lK6d|t1:dK6 V5|t2:K7 V6|t3:K8 V7|t4:K9 V8|t5:K10 V9",
           "i:x0 x1 x2 x3 w C K0 K1 V0 K2 V1 V2 w w|q0:x4 x5 x6 x7|q12:K3 V3 lK4a|q13:lK5b|q14:lV4c|q15:lK6d|p1:lV5e|t0:dK4 dV4 dK5|t1:dK6 dV5|t2:K7 V6|t3:K8 V7|t4:K9 V8|t5:K10 V9"]
    xb = {0: [0, 1, 2, 3], 7: [4, 5, 6, 7]}
    att = "t6:K11 V10|t7:K12 V11|t8:K13 V12|t9:K14 V13|t10:K15 V14|t11:V15|t12:w0 N|t13:w1|t14:w2 w3|t15:w4"
    dpos = [8, 9, 10, 11, 12, 13, 14, 15]
    sm1 = [11, 12, 13, 14]
    sm2 = [0, 2, 4, 5]
    grot = True
    kvrot = 2
    pollmax = 0x4000
    prio = 0
    oprio = 0
    outm = ""
    fine = 0
    sst = None
    lpos = [8, 8, 8, 8]
    wob = [176, 192, 208, 128, 144, 112, 64, 80]

sX, sK, sV, sWQ, sWO, sWS, sOUT, sDBG = 8, 12, 16, 20, 24, 28, 32, 36
sWAVE, sG, sP, sBP, sROT, sSELLO, sSELHI, sHB, sTHR, sTILE, sW1K, sGRP = 40, 41, 42, 43, 44, 45, 46, 47, 48, 49, 50, 51
sT0, sT1, sT2, sT3, sT4, sT5 = 52, 53, 54, 55, 56, 57
sLO1, sHI1 = 58, 59
sCLS, sKOFF, sPUB, sCL = 60, 61, 62, 63
sJT = [None, 96, 97, 98, 99, 100, 101, 4]
sKVR, sSC2, sR16 = 5, 6, 3
sST = 64
def srd(b): return f"s[{b}:{b+3}]"
def vr(a, n): return f"v[{a}:{a+n-1}]" if n > 1 else f"v{a}"

SLOT = 8192
RING = 5 * SLOT
def kslot(b, t): return b * RING + (t % 5) * SLOT
def vslot(b, t): return (2 + b) * RING + (t % 5) * SLOT
def xslot(c): return (c % 4) * RING + (3 + c // 4) * SLOT
OBUF = 0

vO, vKV, vS0, vNM, vQ, vS1 = 0, 64, 96, 112, 128, 160
def vS(t): return vS0 if t % 2 else vS1
vP, vTMP = 224, 232
vKA, vVA = 236, 244
vL, vDK, vDV, vTS = 248, 249, 250, 251
vWOFF, vBA0, vBA1, vLANE = 252, 253, 254, 255
vWA, vXA = vTS, vL
vBF = 160
QRAW = [64, 80, 96, 112, 128]; QA = 144
OA = 96
RSLOT = {c: 176 + 8 * i for i, c in enumerate('abcdef')}
def acc(c, qt): return (c * 4 + qt) * 4

SORD = [1,9,8,2,10,11,12,13,3,4,5,6]
def sstamp(p, t):
    if Opt.sst and t in Opt.sst:
        i = SORD[Opt.sst.index(t)]
        p.raw(f"s_memrealtime s[{sST+2*i}:{sST+2*i+1}]")
def stamp(p, i):
    if Opt.sst and i not in (0, 7): return
    if Opt.stamps and (not Opt.fine or i in (0, 7)): p.raw(f"s_memrealtime s[{sST+2*i}:{sST+2*i+1}]")
FINE = [1, 2, 3, 4, 5, 6, 8, 9, 10, 11, 12, 13]
def fstamp(p, t, k):
    if Opt.fine and t in (Opt.fine, Opt.fine + 1, Opt.fine + 2):
        i = FINE[(t - Opt.fine) * 4 + k]
        p.raw(f"s_memtime s[{sST+2*i}:{sST+2*i+1}]")

def prologue(p):
    e = p.e
    e("s_cmp_ge_u32 s2, 256")
    e("s_cbranch_scc1 L_end")
    e("s_load_dwordx16 s[64:79], s[0:1], 0")
    e("s_load_dwordx8 s[80:87], s[0:1], 64")
    e("s_load_dwordx2 s[88:89], s[0:1], 96")
    e("v_lshrrev_b32 v1, 6, v0")
    e(f"v_and_b32 v{vLANE}, 63, v0")
    e(f"v_readfirstlane_b32 s{sWAVE}, v1")
    e(f"s_lshr_b32 s{sBP}, s2, 4")
    e(f"s_and_b32 s{sP}, s2, 1")
    e(f"s_bfe_u32 s{sG}, s2, 0x10003")
    e(f"s_and_b32 s{sT0}, s2, 6")
    e(f"s_or_b32 s{sG}, s{sG}, s{sT0}")
    e(f"s_lshl_b32 s{sGRP}, s{sBP}, 1")
    e(f"s_or_b32 s{sGRP}, s{sGRP}, s{sP}")
    e(f"s_lshr_b32 s{sROT}, s{sBP}, 1")
    if Opt.grot:
        e(f"s_lshl_b32 s{sT0}, s{sG}, 2"); e(f"s_add_u32 s{sROT}, s{sROT}, s{sT0}"); e(f"s_and_b32 s{sROT}, s{sROT}, 7")
    e(f"s_and_b32 s{sCLS}, s{sBP}, 1")
    e(f"s_lshl_b32 s{sR16}, s{sROT}, 1"); e(f"s_or_b32 s{sR16}, s{sR16}, s{sCLS}")
    e(f"s_and_b32 s{sCL}, s{sBP}, {len(Opt.cls) - 1}")
    for j in range(1, 4): e(f"s_mov_b32 s{sJT[j]}, {j * 16384}")
    if Opt.kvrot == 0: e(f"s_mov_b32 s{sKVR}, 0")
    if Opt.kvrot == 1: e(f"s_lshl_b32 s{sKVR}, s{sBP}, 13")
    if Opt.kvrot == 2: e(f"s_add_u32 s{sKVR}, s{sBP}, s2"); e(f"s_lshl_b32 s{sKVR}, s{sKVR}, 13")
    e(f"s_mov_b32 s{sSELLO}, 0x05040100")
    e(f"s_mov_b32 s{sSELHI}, 0x07060302")
    sc = f2u(128 ** -0.5 * math.log2(math.e))
    e(f"s_mov_b32 s{sSC2}, 0x{sc:08x}"); e(f"s_mov_b32 s{sSC2 + 1}, 0x{sc:08x}")
    e(f"s_mov_b32 s{sTHR}, 0x{f2u(Opt.thr):08x}")
    e(f"s_mov_b32 s{sLO1}, 0x00003f80")
    e(f"s_mov_b32 s{sHI1}, 0x3f800000")
    e(f"s_lshl_b32 s{sW1K}, s{sWAVE}, 10")
    e(f"s_lshr_b32 s{sHB}, s{sWAVE}, 2")
    t0, t1, t2 = vTMP, vTMP + 1, vTMP + 2
    e(f"v_lshrrev_b32 v{t0}, 3, v{vLANE}")
    e(f"v_lshrrev_b32 v{t1}, 4, v{vLANE}")
    e(f"v_and_b32 v{t2}, 7, v{vLANE}")
    e(f"v_xor_b32 v{t2}, v{t1}, v{t2}")
    e(f"v_lshlrev_b32 v{t2}, 4, v{t2}")
    e(f"v_lshl_add_u32 v{vXA}, v{t0}, 10, v{t2}")
    e(f"s_lshl_b32 s{sT0}, s{sWAVE}, 13"); e(f"s_and_b32 s{sT1}, s{sWAVE}, 1"); e(f"s_lshl_b32 s{sT1}, s{sT1}, 6"); e(f"s_or_b32 s{sT0}, s{sT0}, s{sT1}")
    e(f"v_xor_b32 v{vXA}, s{sT0}, v{vXA}")
    e(f"v_and_b32 v{t2}, 7, v{vLANE}")
    e(f"v_lshlrev_b32 v{t2}, 4, v{t2}")
    e(f"v_lshl_add_u32 v{vWOFF}, v{t1}, 16, v{t2}")
    e(f"v_and_b32 v{t0}, 1, v{t0}")
    e(f"v_lshl_add_u32 v{vWOFF}, v{t0}, 13, v{vWOFF}")
    e(f"s_and_b32 s{sT0}, s{sWAVE}, 3"); e(f"s_lshl_b32 s{sT0}, s{sT0}, 8"); e(f"s_lshl_b32 s{sT1}, s{sHB}, 7"); e(f"s_or_b32 s{sT0}, s{sT0}, s{sT1}")
    e(f"s_lshl_b32 s{sT1}, s{sCLS}, 18"); e(f"s_or_b32 s{sT0}, s{sT0}, s{sT1}")
    e(f"v_add_u32 v{vWOFF}, s{sT0}, v{vWOFF}")
    e(f"s_lshl_b32 s{sKOFF}, s{sROT}, 19")
    e(f"s_cmp_eq_u32 s{sP}, 0")
    for d, a in ((sX, 64), (sWQ, 70), (sK, 66), (sV, 68), (sWO, 72)):
        e(f"s_cselect_b32 s{d}, s{a}, s{a+10}")
        e(f"s_cselect_b32 s{d+1}, s{a+1}, s{a+11}")
    e(f"s_lshl_b32 s{sT0}, s{sBP}, 16")
    e(f"s_add_u32 s{sX}, s{sX}, s{sT0}"); e(f"s_addc_u32 s{sX+1}, s{sX+1}, 0")
    e(f"s_mov_b32 s{sX+2}, 65536"); e(f"s_mov_b32 s{sX+3}, 0x00020000")
    e(f"s_lshl_b32 s{sT0}, s{sG}, 10")
    e(f"s_add_u32 s{sWQ}, s{sWQ}, s{sT0}"); e(f"s_addc_u32 s{sWQ+1}, s{sWQ+1}, 0")
    e(f"s_mov_b32 s{sWQ+2}, {4194304 - 7 * 1024}"); e(f"s_mov_b32 s{sWQ+3}, 0x00020000")
    e(f"s_lshl_b32 s{sT0}, s{sBP}, 21"); e(f"s_lshl_b32 s{sT1}, s{sG}, 17"); e(f"s_add_u32 s{sT0}, s{sT0}, s{sT1}")
    for d in (sK, sV):
        e(f"s_add_u32 s{d}, s{d}, s{sT0}"); e(f"s_addc_u32 s{d+1}, s{d+1}, 0")
        e(f"s_mov_b32 s{d+2}, {1048576 + 131072}"); e(f"s_mov_b32 s{d+3}, 0x00020000")
    e(f"s_lshl_b32 s{sT0}, s{sG}, 19")
    e(f"s_add_u32 s{sWO}, s{sWO}, s{sT0}"); e(f"s_addc_u32 s{sWO+1}, s{sWO+1}, 0")
    e(f"s_mov_b32 s{sWO+2}, 524288"); e(f"s_mov_b32 s{sWO+3}, 0x00020000")
    e(f"s_mov_b32 s{sOUT}, s84"); e(f"s_mov_b32 s{sOUT+1}, s85"); e(f"s_mov_b32 s{sOUT+2}, 2097152"); e(f"s_mov_b32 s{sOUT+3}, 0x00020000")
    e(f"s_mov_b32 s{sDBG}, s86"); e(f"s_mov_b32 s{sDBG+1}, s87"); e(f"s_mov_b32 s{sDBG+2}, 256"); e(f"s_mov_b32 s{sDBG+3}, 0x00020000")
    e(f"s_mov_b32 s{sWS}, s88"); e(f"s_mov_b32 s{sWS+1}, s89"); e(f"s_mov_b32 s{sWS+2}, 268435456"); e(f"s_mov_b32 s{sWS+3}, 0x00020000")
    setvcc(p)
    stamp(p, 0)
    if Opt.stamps: p.raw(f"s_memtime s[{sST+28}:{sST+29}]")

def setup2(p):
    e = p.e
    t0, t1, t2 = vTMP, vTMP + 1, vTMP + 2
    e(f"v_lshrrev_b32 v{t0}, 4, v{vLANE}")
    e(f"s_lshl_b32 s{sT0}, s{sWAVE}, 2")
    e(f"v_add_u32 v{t1}, s{sT0}, v{t0}")
    e(f"v_xor_b32 v{t2}, v{vLANE}, v{t1}")
    e(f"v_and_b32 v{t2}, 15, v{t2}")
    e(f"v_lshlrev_b32 v{t2}, 4, v{t2}")
    e(f"v_lshl_add_u32 v{vDK}, v{t1}, 8, v{t2}")
    e(f"v_lshlrev_b32 v{t2}, 2, v{t0}")
    e(f"v_xor_b32 v{t2}, v{vLANE}, v{t2}")
    e(f"v_and_b32 v{t2}, 15, v{t2}")
    e(f"v_lshlrev_b32 v{t2}, 4, v{t2}")
    e(f"v_lshl_add_u32 v{vDV}, v{t1}, 8, v{t2}")
    e(f"v_and_b32 v{t1}, 15, v{vLANE}")
    e(f"v_lshrrev_b32 v{t2}, 1, v{t1}")
    e(f"v_xor_b32 v{t2}, v{t2}, v{t0}")
    e(f"v_lshlrev_b32 v{t2}, 4, v{t2}")
    e(f"v_lshl_add_u32 v{vBA0}, v{t1}, 7, v{t2}")
    e(f"s_lshl_b32 s{sT1}, s{sCLS}, 6"); e(f"s_lshl_b32 s{sT0}, s{sHB}, 12"); e(f"s_or_b32 s{sT0}, s{sT0}, s{sT1}")
    e(f"v_xor_b32 v{vBA0}, s{sT0}, v{vBA0}")
    e(f"v_xor_b32 v{vBA1}, 0x1000, v{vBA0}")
    e(f"s_lshl_b32 s{sPUB}, s{sGRP}, 19"); e(f"s_lshl_b32 s{sT1}, s{sG}, 10"); e(f"s_add_u32 s{sPUB}, s{sPUB}, s{sT1}")
    e(f"s_lshl_b32 s{sT1}, s{sWAVE}, 13"); e(f"s_add_u32 s{sPUB}, s{sPUB}, s{sT1}")

def att_setup(p):
    e = p.e
    t0, t1, t2 = vTMP, vTMP + 1, vTMP + 2
    e(f"v_and_b32 v{t0}, 31, v{vLANE}")
    e(f"v_lshrrev_b32 v{t1}, 5, v{vLANE}")
    e(f"v_and_b32 v{t2}, 15, v{vLANE}")
    e(f"v_xor_b32 v{t1}, v{t1}, v{t2}")
    e(f"v_lshlrev_b32 v{t1}, 4, v{t1}")
    e(f"v_lshl_add_u32 v{t1}, v{t0}, 8, v{t1}")
    e(f"s_lshl_b32 s{sT0}, s{sHB}, 7")
    e(f"v_xor_b32 v{t1}, s{sT0}, v{t1}")
    e(f"s_mul_i32 s{sT0}, s{sHB}, {RING}")
    e(f"v_add_u32 v{vKA}, s{sT0}, v{t1}")
    for s in range(1, 8): e(f"v_xor_b32 v{vKA + s}, {32 * s}, v{vKA}")
    e(f"v_bfe_u32 v{t0}, v{vLANE}, 2, 2")
    e(f"v_lshrrev_b32 v{t1}, 5, v{vLANE}")
    e(f"v_lshl_add_u32 v{t1}, v{t1}, 2, v{t0}")
    e(f"v_lshlrev_b32 v{t1}, 8, v{t1}")
    e(f"v_lshl_add_u32 v{t1}, v{t0}, 6, v{t1}")
    e(f"v_bfe_u32 v{t0}, v{vLANE}, 4, 1")
    e(f"v_lshl_add_u32 v{t1}, v{t0}, 5, v{t1}")
    e(f"v_and_b32 v{t0}, 3, v{vLANE}")
    e(f"v_lshl_add_u32 v{t1}, v{t0}, 3, v{t1}")
    e(f"s_add_u32 s{sT0}, s{sT0}, {2 * RING}")
    e(f"v_add_u32 v{vVA}, s{sT0}, v{t1}")
    for t in range(1, 4): e(f"v_xor_b32 v{vVA + t}, {64 * t}, v{vVA}")

def wo_setup(p):
    e = p.e
    t0, t1 = vTMP, vTMP + 1
    e(f"v_bfe_u32 v{t0}, v{vLANE}, 5, 1")
    e(f"v_lshlrev_b32 v{t0}, 14, v{t0}")
    e(f"v_bfe_u32 v{t1}, v{vLANE}, 4, 1")
    e(f"v_lshl_add_u32 v{t0}, v{t1}, 12, v{t0}")
    e(f"v_bfe_u32 v{t1}, v{vLANE}, 3, 1")
    e(f"v_lshl_add_u32 v{t0}, v{t1}, 10, v{t0}")
    e(f"v_and_b32 v{t1}, 7, v{vLANE}")
    e(f"v_lshl_add_u32 v{t0}, v{t1}, 4, v{t0}")
    e(f"s_lshr_b32 s{sT0}, s{sW1K}, 3")
    e(f"v_add_u32 v{vWOFF}, s{sT0}, v{t0}")

def pub_addr(p, dst, t0):
    e = p.e
    e(f"v_bfe_u32 v{t0}, v{vLANE}, 3, 1")
    e(f"v_lshlrev_b32 v{dst}, 16, v{t0}")
    e(f"v_and_b32 v{t0}, 7, v{vLANE}")
    e(f"v_lshl_add_u32 v{dst}, v{t0}, 4, v{dst}")
    e(f"v_bfe_u32 v{t0}, v{vLANE}, 4, 1")
    e(f"v_lshl_add_u32 v{dst}, v{t0}, 7, v{dst}")
    e(f"v_lshrrev_b32 v{t0}, 5, v{vLANE}")
    e(f"v_lshl_add_u32 v{dst}, v{t0}, 9, v{dst}")

class St:
    def __init__(self, cid, spec):
        self.cid = cid
        self.acts = {x.split(':')[0]: x.split(':')[1].split() for x in spec.split('|')}
        self.held = {}; self.live = {}; self.have = set(); self.wdone = []; self.seen = []; self.w = 0; self.setup = False
    def key(self): return (sorted(self.live.items()), sorted(map(str, self.have)), self.wdone)
TILES = {0: [], 1: []}
def kv_pieces(p, kind, t, reg=None):
    def f(b):
        if b == 0:
            p.e(f"s_add_u32 s{sT2}, s{sKVR}, {t * 8192}")
            p.e(f"s_and_b32 s{sT2}, s{sT2}, 0x1ffff")
        else: p.e(f"s_or_b32 s{sT2}, s{sT2}, 0x100000")
        a, r = (vDK, sK) if kind == 'K' else (vDV, sV)
        if reg is None:
            p.e(f"s_add_u32 m0, s{sW1K}, {kslot(b, t) if kind == 'K' else vslot(b, t)}")
            p.e(f"buffer_load_dwordx4 v{a}, {srd(r)}, s{sT2} offen nt lds", tag=(kind, t))
        else:
            p.e(f"buffer_load_dwordx4 {vr(reg + 4 * b, 4)}, v{a}, {srd(r)}, s{sT2} offen nt")
    return [lambda: f(0), lambda: f(1)]

def reg_load(p, st, it):
    kind = it[1]; t = int(it[2:-1]); reg = RSLOT[it[-1]]
    assert reg not in st.live, it
    st.held[(kind, t)] = reg; st.live[reg] = (kind, t)
    return kv_pieces(p, kind, t, reg)

def reg_dump(p, st, kind, t):
    reg = st.held[(kind, t)]; del st.live[reg]
    a = vBA0 if kind == 'K' else vBA1
    def f(b):
        off = (t % 5) * SLOT + b * RING
        if off > 65535:
            p.e(f"v_add_u32 v{a}, {RING}, v{a}")
            p.e(f"ds_write_b128 v{a}, {vr(reg + 4 * b, 4)} offset:{off - RING}")
            p.e(f"v_subrev_u32 v{a}, {RING}, v{a}")
        else: p.e(f"ds_write_b128 v{a}, {vr(reg + 4 * b, 4)} offset:{off}")
    return [lambda: f(0), lambda: f(1)]

def wq_load(p, s, buf):
    e = p.e
    def one(j):
        if j == 0:
            if s % 2 == 0:
                if s > 0:
                    e(f"s_add_u32 s{sKOFF}, s{sKOFF}, {1 << 19}"); e(f"s_and_b32 s{sKOFF}, s{sKOFF}, {(1 << 22) - 1}")
                e(f"v_add_u32 v{vWA}, s{sKOFF}, v{vWOFF}")
            else:
                e(f"v_xor_b32 v{vWA}, {1 << 18}, v{vWA}")
        e(f"buffer_load_dwordx4 {vr(buf + 4 * j, 4)}, v{vWA}, {srd(sWQ)}, {'0' if j == 0 else 's%d' % sJT[j]} offen")
    return [lambda j=j: one(j) for j in range(4)]

def wo_load(p, s, buf):
    e = p.e
    def one(j):
        if j == 0:
            e(f"s_add_u32 s{sT4}, s{sR16}, {s}"); e(f"s_and_b32 s{sT4}, s{sT4}, 15"); e(f"s_lshl_b32 s{sT4}, s{sT4}, 15"); e(f"s_add_u32 s{sT5}, s{sT4}, 8192")
        e(f"buffer_load_dwordx4 {vr(buf + 4 * j, 4)}, v{vWOFF}, {srd(sWO)}, s{sT4 if j < 2 else sT5} offen offset:{(j % 2) * 2048}")
    return [lambda j=j: one(j) for j in range(4)]

def run(th):
    for t in th: t()

def prep(p, raw, eh, fr):
    L = []
    def a(j): p.e(f"v_cndmask_b32_dpp v{fr + 8 * eh + 4 + j}, v{raw + 4 * j + 2 + eh}, v{raw + 4 * j + eh}, vcc row_ror:8 row_mask:0xf bank_mask:0xf")
    def b(j): p.e(f"v_mov_b32_dpp v{raw + 4 * j + 2 + eh}, v{raw + 4 * j + eh} row_ror:8 row_mask:0xf bank_mask:0x3")
    def c(j): p.e(f"v_perm_b32 v{fr + 8 * eh + j}, v{raw + 4 * j + 2 + eh}, v{fr + 8 * eh + 4 + j}, s{sSELLO}")
    def d(j): p.e(f"v_perm_b32 v{fr + 8 * eh + 4 + j}, v{raw + 4 * j + 2 + eh}, v{fr + 8 * eh + 4 + j}, s{sSELHI}")
    for j0 in (0, 2):
        for f in (a, b, c, d):
            for j in (j0, j0 + 1): L.append(lambda f=f, j=j: f(j))
    return L
def setvcc(p):
    p.raw("s_mov_b32 vcc_lo, 0x00ff00ff"); p.raw("s_mov_b32 vcc_hi, 0x00ff00ff")

ORDER = [(c, q) for c in range(2) for q in range(4)] + [(c, q) for q in range(4) for c in (2, 3)]
def proj(p, bufs, fr, load, bread, hook=None):
    nb = len(bufs)
    run(prep(p, bufs[0], 0, fr))
    for s in range(16):
        th = load(p, s + nb, bufs[s % nb]) if s + nb < 16 else []
        pr = prep(p, bufs[s % nb], 1, fr) + (prep(p, bufs[(s + 1) % nb], 0, fr) if s < 15 else [])
        for m, (c, qt) in enumerate(ORDER):
            cin = "0" if s == 0 else vr(acc(c, qt), 4)
            p.e(f"v_mfma_f32_16x16x32_bf16 {vr(acc(c, qt), 4)}, {vr(fr + 4 * c, 4)}, {vr(vBF + 4 * qt, 4)}, {cin}")
            if m == 8 and hook: hook(s, 8)
            if c == 3 and s < 15: bread(s + 1, qt)
            for k, pos in enumerate(Opt.lpos):
                if th and pos == m: th[k]()
            run(pr[2 * m:2 * m + 2])
        if hook: hook(s, 16)

def xch(p, c):
    e = p.e
    e(f"s_add_u32 s{sT0}, s{sROT}, {c}"); e(f"s_and_b32 s{sT0}, s{sT0}, 7"); e(f"s_lshl_b32 s{sT0}, s{sT0}, 7")
    e(f"s_add_u32 m0, s{sW1K}, {xslot(c)}")
    e(f"buffer_load_dwordx4 v{vXA}, {srd(sX)}, s{sT0} offen lds", tag=('x', c))

def clear(p, d, a):
    e = p.e
    pub_addr(p, a, d)
    for i in range(4): e(f"v_mov_b32 v{d + i}, -1")
    for qt in range(4):
        e(f"s_add_u32 s{sT0}, s{sPUB}, {qt * 131072}")
        for half in range(2):
            e(f"buffer_store_dwordx4 {vr(d, 4)}, v{a}, {srd(sWS)}, s{sT0} offen offset:{half * 256} sc1", tag='C')

def need_setup(p, st):
    if not st.setup: setup2(p); st.setup = True
def point(p, st, name, step):
    for it in st.acts.pop(name, []):
        st.seen.append(it)
        if it == 'w': run(wq_load(p, st.w, QRAW[st.w])); st.w += 1
        elif it[0] == 'x': xch(p, int(it[1]))
        elif it == 'C': need_setup(p, st); clear(p, vP, vP + 4)
        elif it == 's': need_setup(p, st)
        elif it == 'a': att_setup(p)
        elif it[0] in 'KV':
            need_setup(p, st)
            t = int(it[1:]); assert t < 3 or (t == 3 and step >= 7), (it, step)
            run(kv_pieces(p, it[0], t)); st.have.add((it[0], t))
        elif it[0] == 'l': need_setup(p, st); run(reg_load(p, st, it))
        else: raise ValueError(it)

def phase1(p, st):
    e = p.e
    nb = Opt.NB; bufs = QRAW[:nb]
    seen = st.seen
    hasa = any('a' in v for v in st.acts.values())
    point(p, st, 'i', -1)
    assert st.w == nb
    need_setup(p, st)
    if not hasa: att_setup(p)
    cur = [0]
    def bread(s, qt):
        want = xslot(s // 2)
        if qt == 0 and s > 0:
            d = want - cur[0]
            big = not (0 <= d and d + 2048 <= 65535)
            for a in (vBA0, vBA1):
                e(f"v_xor_b32 v{a}, 64, v{a}")
                if big: e(f"v_add_u32 v{a}, {d & 0xffffffff}, v{a}")
            if big: cur[0] = want
        e(f"ds_read_b128 {vr(vBF + 4 * qt, 4)}, v{vBA0 + qt // 2} offset:{want - cur[0] + (qt % 2) * 2048}")
    vis = set()
    def xbar(s):
        for c in Opt.xb[s]: assert f'x{c}' in seen, (s, c)
        p.wait_tags([('x', c) for c in Opt.xb[s]])
        p.barrier(f'x{s}', lazy=True)
        vis.update(Opt.xb[s])
    xbar(0)
    stamp(p, 1)
    for qt in range(4): bread(0, qt)
    def hook(s, m):
        if m == 8:
            if s in Opt.xb and s > 0: xbar(s)
            assert s == 15 or (s + 1) // 2 in vis
            if s == 3: stamp(p, 9)
            if s == 7: stamp(p, 8)
        else:
            point(p, st, f'q{s}', s)
    assert 7 in Opt.xb
    proj(p, bufs, QA, wq_load, bread, hook)

def phase1_post(p, st):
    e = p.e
    hasC = True
    assert 'C' in st.seen
    stamp(p, 2)
    point(p, st, 'p0', 15)
    e(f"s_and_b32 s{sT0}, s{sWAVE}, 3"); e(f"s_mul_i32 s{sT0}, s{sT0}, {RING}"); e(f"s_lshl_b32 s{sT1}, s{sHB}, 12"); e(f"s_add_u32 s{sT0}, s{sT0}, s{sT1}")
    e(f"v_lshl_add_u32 v{vBA0}, v{vLANE}, 4, s{sT0}")
    e(f"v_xor_b32 v{vBA1}, 0x1000, v{vBA0}")
    for own, dst in ((1, 64), (0, vQ)):
        for ql in range(2):
            qt = 2 * own + ql
            for c in range(4):
                for j in (0, 2): e(f"v_pk_mul_f32 {vr(acc(c, qt) + j, 2)}, {vr(acc(c, qt) + j, 2)}, s[{sSC2}:{sSC2 + 1}]")
            for half in range(2):
                for w in range(4):
                    j = 2 * half + w // 2; c = 2 * (w % 2)
                    e(f"v_cvt_pk_bf16_f32 v{dst + (2 * ql + half) * 4 + w}, v{acc(c, qt) + j}, v{acc(c + 1, qt) + j}")
        for qd in range(4):
            for w in range(2): e(f"v_permlane32_swap_b32 v{dst + qd * 4 + w}, v{dst + qd * 4 + 2 + w}")
        for half in range(2):
            for w in range(4): e(f"v_permlane16_swap_b32 v{dst + half * 4 + w}, v{dst + (2 + half) * 4 + w}")
        if own == 1:
            if hasC: p.wait_tags(['C'])
            p.barrier('xd', lazy=True)
            for r in range(4): e(f"ds_write_b128 v{vBA0}, {vr(dst + 4 * r, 4)} offset:{4 * SLOT + r * 1024}")
            if hasC: signal(p)
            point(p, st, 'p1', 15)
    wo_setup(p)
    assert ('K', 0) in st.have and ('K', 1) in st.have
    p.wait_tags([('K', 0), ('K', 1)])
    p.barrier('q1', lazy=True)
    for s in range(4): kread(p, 0, s)
    for r in range(4): e(f"ds_read_b128 {vr(vQ + 16 + 4 * r, 4)}, v{vBA1} offset:{4 * SLOT + r * 1024}")
    for s in range(4, 8): kread(p, 0, s)
    e(f"v_lshl_add_u32 v{vBA0}, v{vLANE}, 4, s{sW1K}")
    e(f"v_add_u32 v{vBA1}, {2 * RING}, v{vBA0}")
    point(p, st, 'p2', 15)

def signal(p):
    e = p.e
    a, d = vTMP + 2, vTMP + 3
    e(f"s_lshl_b32 s{sT0}, s{sGRP}, 2"); e(f"s_add_u32 s{sT0}, s{sT0}, s{sW1K}")
    e(f"v_lshl_add_u32 v{a}, v{vLANE}, 8, s{sT0}")
    e(f"v_mov_b32 v{d}, 1")
    e(f"buffer_atomic_add v{d}, v{a}, {srd(sDBG)}, 0 offen sc1")

def kread(p, t, s): p.e(f"ds_read_b128 {vr(vKV + 4 * s, 4)}, v{vKA + s} offset:{(t % 5) * SLOT}")
def vread(p, t, f):
    u, dt = f // 4, f % 4
    for half in range(2):
        p.e(f"ds_read_b64_tr_b16 {vr(vKV + 4 * f + 2 * half, 2)}, v{vVA + dt} offset:{(t % 5) * SLOT + (16 * u + 8 * half) * 256}")

def rowmax(p, S, dst, tmp):
    e = p.e
    e(f"v_max3_f32 v{dst}, v{S}, v{S+1}, v{S+2}")
    for i in range(3, 15, 2): e(f"v_max3_f32 v{dst}, v{dst}, v{S+i}, v{S+i+1}")
    e(f"v_max_f32 v{dst}, v{dst}, v{S+15}")
    e(f"v_mov_b32 v{tmp}, v{dst}")
    e(f"v_permlane32_swap_b32 v{dst}, v{tmp}")
    e(f"v_max_f32 v{dst}, v{dst}, v{tmp}")

def sm_exp(p, S, i):
    a = vTMP + 2 * (i % 2)
    p.e(f"v_exp_f32 v{a}, v{S + 2 * i}"); p.e(f"v_exp_f32 v{a + 1}, v{S + 2 * i + 1}")
def sm_fin(p, i):
    a = vTMP + 2 * (i % 2)
    if i == 0:
        p.e(f"v_add_f32 v{vTS}, v{a}, v{a + 1}"); p.e(f"v_cvt_pk_bf16_f32 v{vP + i}, v{a}, v{a + 1}")
    else:
        p.e(f"v_add_f32 v{vTS}, v{vTS}, v{a}"); p.e(f"v_cvt_pk_bf16_f32 v{vP + i}, v{a}, v{a + 1}"); p.e(f"v_add_f32 v{vTS}, v{vTS}, v{a + 1}")

def cnt_load(p, raw=False):
    t = f"buffer_load_dword v{vBA0}, v{vBA1}, {srd(sDBG)}, 0 offen sc1"
    if raw: p.raw(t)
    else:
        p.e(f"s_lshl_b32 s{sT0}, s{sGRP}, 2"); p.e(f"s_add_u32 s{sT0}, s{sT0}, s{sW1K}")
        p.e(f"v_mov_b32 v{vBA1}, s{sT0}")
        p.e(t)
def cnt_get(p):
    e = p.e
    e(f"v_readfirstlane_b32 s{sT0}, v{vBA0}")
    e(f"s_mov_b32 s{sT3}, {Opt.pollmax}")
    e(f"s_cmp_lg_u32 s{sWAVE}, 0")
    e(f"s_cbranch_scc1 L_cnt_ok")
    p.label("L_cnt")
    e(f"s_cmp_ge_u32 s{sT0}, 8")
    e(f"s_cbranch_scc1 L_cnt_ok")
    e(f"s_sub_u32 s{sT3}, s{sT3}, 1")
    e(f"s_cbranch_scc1 L_cnt_ok")
    cnt_load(p, True)
    p.raw("s_waitcnt vmcnt(0)")
    p.raw(f"v_readfirstlane_b32 s{sT0}, v{vBA0}")
    p.raw("s_nop 1")
    e("s_branch L_cnt")
    p.label("L_cnt_ok")

def att_pre(p, st):
    e = p.e
    if Opt.prio:
        e(f"s_cmp_eq_u32 s{sHB}, 0"); e(f"s_cbranch_scc1 L_np{st.cid}"); e(f"s_setprio {Opt.prio}"); p.label(f"L_np{st.cid}")
    stamp(p, 10)
    S = vS(0)
    for s in range(8):
        e(f"v_mfma_f32_32x32x16_bf16 {vr(S, 16)}, {vr(vKV + 4 * s, 4)}, {vr(vQ + 4 * s, 4)}, {'0' if s == 0 else vr(S, 16)}")
        kread(p, 1, s)
    point(p, st, 'p3', 15)
    rowmax(p, S, vTMP, vTMP + 1)
    for i in range(16): e(f"v_sub_f32 v{vNM+i}, 0, v{vTMP}")
    for i in range(16): e(f"v_add_f32 v{S+i}, v{S+i}, v{vNM}")
    n1 = len(Opt.sm1)
    for i in range(n1):
        sm_exp(p, S, i)
        if i: sm_fin(p, i - 1)

def att_loop(p, st, T):
    e = p.e
    n1 = len(Opt.sm1)
    have, wdone, live = st.have, st.wdone, st.live
    for t in T:
        if t in (4, 8, 12): stamp(p, 10 + t // 4)
        gap = {g: [] for g in range(-1, 16)}
        pieces = []; newhave = []
        for it in st.acts.pop(f't{t}', []):
            if it[0] in 'KV' or it[0] == 'd':
                d = it[0] == 'd'
                kind, tt = it[d], int(it[d + 1:])
                assert tt <= t + (4 if kind == 'V' else 5), (t, it)
                newhave.append((kind, tt))
                if d:
                    assert 'N' not in have
                    pieces += reg_dump(p, st, kind, tt)
                elif 'n' not in Opt.dbg: pieces += kv_pieces(p, kind, tt)
            elif it[0] == 'l':
                pieces += reg_load(p, st, it)
            elif it == 'N': have.add('N'); pieces.append(lambda: cnt_load(p))
            elif it[0] == 'w':
                sw = int(it[1:]); b = Opt.wob[sw]
                assert not any(b <= r < b + 16 for r in live), (t, it)
                assert b >= 176 or (b in (128, 144) and (t == 15 or (t == 14 and min(Opt.dpos) >= 8)))
                th = wo_load(p, sw, b); wdone.append(sw)
                pieces += th
            else: raise ValueError(it)
        np_ = len(Opt.dpos)
        per = max(1, -(-len(pieces) // np_))
        for i, x in enumerate(pieces): gap[Opt.dpos[i // per]].append(x)
        fstamp(p, t, 0)
        need = [('V', t)] + ([('K', t + 2)] if t < 14 else [])
        for n in need: assert n in have, (t, n)
        p.wait_tags(need)
        p.barrier(f'B{t}', lazy=True)
        have.update(newhave)
        sstamp(p, t)
        fstamp(p, t, 1)
        sm = {g: [] for g in range(16)}
        for k, g in enumerate(Opt.sm2):
            i = n1 + k
            sm[g].append(lambda i=i: (sm_exp(p, vS(t), i), sm_fin(p, i - 1)))
        sm[min(Opt.sm2[-1] + 1, 7)].append(lambda: sm_fin(p, 7))
        if t < 15:
            for i, g in enumerate(Opt.sm1):
                assert i == 0 or g >= 11
                sm[g].append(lambda i=i: (sm_exp(p, vS(t + 1), i), sm_fin(p, i - 1) if i else None))
        for s in range(8):
            if t < 15:
                Sn = vS(t + 1)
                e(f"v_mfma_f32_32x32x16_bf16 {vr(Sn, 16)}, {vr(vKV + 4 * s, 4)}, {vr(vQ + 4 * s, 4)}, {vr(vNM if s == 0 else Sn, 16)}")
            vread(p, t, s)
            run(sm[s]); run(gap[s])
        fstamp(p, t, 2)
        if t == 0: e(f"v_mov_b32 v{vL}, v{vTS}")
        else:
            e(f"v_cmp_lt_f32 vcc, s{sTHR}, v{vTS}")
            tid = 16 * st.cid + t; TILES[t % 2].append(tid)
            e(f"s_mov_b32 s{sTILE}, {tid}")
            e(f"s_cbranch_vccnz FIX_{t % 2}")
            p.label(f"SM_{tid}")
            e(f"v_add_f32 v{vL}, v{vL}, v{vTS}")
        for f in range(8):
            u, dt = f // 4, f % 4
            cin = "0" if (t == 0 and u == 0) else vr(vO + 16 * dt, 16)
            e(f"v_mfma_f32_32x32x16_bf16 {vr(vO + 16 * dt, 16)}, {vr(vKV + 4 * f, 4)}, {vr(vP + 4 * u, 4)}, {cin}")
            if t < 14: kread(p, t + 2, f)
            run(sm[8 + f]); run(gap[8 + f])
            if f == 3: fstamp(p, t, 3)

def att_post(p, st):
    e = p.e
    have, wdone, live = st.have, st.wdone, st.live
    assert wdone == list(range(len(wdone))) and 'N' in have and not live and not st.acts
    stamp(p, 3)
    sstamp(p, 16)
    if Opt.prio: e("s_setprio 0")
    late = list(range(len(wdone), len(Opt.wob)))
    for sw in [x for x in late if Opt.wob[x] >= 96]: run(wo_load(p, sw, Opt.wob[sw]))
    cnt_get(p)
    e(f"v_mov_b32 v{vTMP}, v{vL}")
    e(f"v_permlane32_swap_b32 v{vL}, v{vTMP}")
    e(f"v_add_f32 v{vL}, v{vL}, v{vTMP}")
    e(f"v_rcp_f32 v{vL}, v{vL}")
    t0, t1 = vTMP, vTMP + 1
    e(f"v_and_b32 v{t0}, 15, v{vLANE}"); e(f"v_lshlrev_b32 v{t0}, 4, v{t0}")
    e(f"v_bfe_u32 v{t1}, v{vLANE}, 4, 1"); e(f"v_lshl_add_u32 v{t0}, v{t1}, 10, v{t0}")
    e(f"v_lshrrev_b32 v{t1}, 5, v{vLANE}"); e(f"v_lshl_add_u32 v{t0}, v{t1}, 8, v{t0}")
    e(f"s_and_b32 s{sT0}, s{sWAVE}, 3"); e(f"s_lshl_b32 s{sT0}, s{sT0}, 14"); e(f"s_lshl_b32 s{sT1}, s{sHB}, 11"); e(f"s_add_u32 s{sT0}, s{sT0}, s{sT1}")
    e(f"v_add_u32 v{vBA1}, s{sT0}, v{t0}")
    e(f"v_mov_b32 v{vL + 1}, v{vL}")
    for dt in range(4):
        for i in range(0, 16, 2): e(f"v_pk_mul_f32 {vr(vO + 16 * dt + i, 2)}, {vr(vO + 16 * dt + i, 2)}, {vr(vL, 2)}")
        for w in range(8): e(f"v_cvt_pk_bf16_f32 v{vO + 16 * dt + w}, v{vO + 16 * dt + 2 * w}, v{vO + 16 * dt + 2 * w + 1}")
        for mm in range(2): e(f"ds_write_b128 v{vBA1}, {vr(vO + 16 * dt + 4 * mm, 4)} offset:{OBUF + dt * 4096 + mm * 512}")
    for sw in [x for x in late if Opt.wob[x] < 96]: run(wo_load(p, sw, Opt.wob[sw]))
    p.barrier('o')

def fix(p, par):
    e = p.e
    S, Sn = vS(par), vS(par + 1)
    p.label(f"FIX_{par}")
    p.settle()
    rowmax(p, S, vTMP, vTMP + 1)
    e(f"v_max_f32 v{vTMP}, 0, v{vTMP}")
    e(f"v_exp_f32 v{vTMP+1}, -v{vTMP}")
    for i in range(16): e(f"v_sub_f32 v{S+i}, v{S+i}, v{vTMP}")
    for i in range(16): e(f"v_sub_f32 v{Sn+i}, v{Sn+i}, v{vTMP}")
    for i in range(16): e(f"v_sub_f32 v{vNM+i}, v{vNM+i}, v{vTMP}")
    for i in range(64): e(f"v_mul_f32 v{vO+i}, v{vO+i}, v{vTMP+1}")
    e(f"v_mul_f32 v{vL}, v{vL}, v{vTMP+1}")
    for i in range(8): sm_exp(p, S, i); sm_fin(p, i)
    p.settle()
    ts = TILES[par]
    for t in ts[:-1]:
        e(f"s_cmp_eq_u32 s{sTILE}, {t}")
        e(f"s_cbranch_scc1 SM_{t}")
    e(f"s_branch SM_{ts[-1]}")

def outproj(p):
    e = p.e
    if Opt.oprio:
        e(f"s_cmp_lg_u32 s{sHB}, 0"); e("s_cbranch_scc1 L_nop"); e(f"s_setprio {Opt.oprio}"); p.label("L_nop")
    setvcc(p)
    e(f"v_lshlrev_b32 v{vBA0}, 4, v{vLANE}")
    def bread(s, qt):
        if qt == 0:
            e(f"s_add_u32 s{sT2}, s{sR16}, {s}"); e(f"s_and_b32 s{sT2}, s{sT2}, 15"); e(f"s_lshl_b32 s{sT2}, s{sT2}, 12")
            e(f"v_add_u32 v{vBA1}, s{sT2}, v{vBA0}")
        e(f"ds_read_b128 {vr(vBF + 4 * qt, 4)}, v{vBA1} offset:{OBUF + qt * 1024}")
    for qt in range(4): bread(0, qt)
    pub_addr(p, vKA, vKA + 1)
    proj(p, Opt.wob, OA, wo_load, bread)
    stamp(p, 4)
    for qt in range(4):
        e(f"s_add_u32 s{sT0}, s{sPUB}, {qt * 131072}")
        for half in range(2):
            r = 64 + (2 * qt + half) * 4
            for w in range(4):
                j = 2 * half + w // 2; c = 2 * (w % 2)
                e(f"v_cvt_pk_bf16_f32 v{r + w}, v{acc(c, qt) + j}, v{acc(c + 1, qt) + j}")
            for w in range(4): e(f"v_min_u32 v{r + w}, -2, v{r + w}")
            e(f"buffer_store_dwordx4 {vr(r, 4)}, v{vKA}, {srd(sWS)}, s{sT0} offen offset:{half * 256} sc1")
    if Opt.oprio: e("s_setprio 0")
    stamp(p, 5)

def reduce_out(p):
    e = p.e
    sM = sT5
    e(f"s_lshl_b32 s{sT0}, s{sGRP}, 19"); e(f"s_lshl_b32 s{sT1}, s{sG}, 16"); e(f"s_add_u32 s{sT0}, s{sT0}, s{sT1}")
    e(f"s_lshl_b32 s{sT1}, s{sWAVE}, 13"); e(f"s_add_u32 s{sT0}, s{sT0}, s{sT1}")
    e(f"s_add_u32 s{sT1}, s{sT0}, 4096")
    e(f"v_and_b32 v48, 7, v{vLANE}"); e(f"v_lshlrev_b32 v48, 11, v48")
    e(f"v_bfe_u32 v49, v{vLANE}, 3, 1"); e(f"v_lshl_add_u32 v48, v49, 6, v48")
    e(f"v_bfe_u32 v49, v{vLANE}, 4, 1"); e(f"v_lshl_add_u32 v48, v49, 5, v48")
    e(f"v_lshrrev_b32 v49, 5, v{vLANE}"); e(f"v_lshl_add_u32 v48, v49, 4, v48")
    e(f"s_lshl_b32 s{sT2}, s{sBP}, 17"); e(f"s_lshl_b32 s{sT3}, s{sG}, 14"); e(f"s_add_u32 s{sT2}, s{sT2}, s{sT3}")
    e(f"s_lshl_b32 s{sT3}, s{sP}, 10"); e(f"s_add_u32 s{sT2}, s{sT2}, s{sT3}")
    e(f"s_lshr_b32 s{sT3}, s{sW1K}, 3"); e(f"s_add_u32 s{sT2}, s{sT2}, s{sT3}")
    e(f"s_mov_b32 s{sM}, 0xff")
    e(f"s_mov_b32 s{sT4}, {Opt.pollmax}")
    p.label("L_poll")
    for g in range(8):
        e(f"s_bitcmp1_b32 s{sM}, {g}")
        e(f"s_cbranch_scc0 L_sk{g}")
        e(f"buffer_load_dwordx4 {vr(4 * g, 4)}, v{vBA0}, {srd(sWS)}, s{sT0 if g < 4 else sT1} offen offset:{(g % 4) * 1024} sc1")
        p.label(f"L_sk{g}")
    e(f"s_mov_b32 s{sM}, 0")
    p.wait_vm(0)
    for g in range(8):
        e(f"v_max3_u32 v{32 + g}, v{4 * g}, v{4 * g + 1}, v{4 * g + 2}")
        e(f"v_max_u32 v{32 + g}, v{32 + g}, v{4 * g + 3}")
    for g in range(8):
        e(f"v_cmp_eq_u32 vcc, -1, v{32 + g}")
        e(f"s_cbranch_vccz L_ok{g}")
        e(f"s_bitset1_b32 s{sM}, {g}")
        p.label(f"L_ok{g}")
    e(f"s_cmp_eq_u32 s{sM}, 0")
    e(f"s_cbranch_scc1 L_pollx")
    e(f"s_sub_u32 s{sT4}, s{sT4}, 1")
    e(f"s_cbranch_scc1 L_pollx")
    if Opt.sleep: e(f"s_sleep {Opt.sleep}")
    e(f"s_branch L_poll")
    p.label("L_pollx")
    stamp(p, 6)
    for c in range(8):
        if c % 2: e(f"v_and_b32 v{32 + c}, 0xffff0000, v{c // 2}")
        else: e(f"v_lshlrev_b32 v{32 + c}, 16, v{c // 2}")
    for g in range(1, 8):
        for c in range(8): e(f"v_dot2c_f32_bf16 v{32 + c}, s{sHI1 if c % 2 else sLO1}, v{4 * g + c // 2}")
    for w in range(4): e(f"v_cvt_pk_bf16_f32 v{40 + w}, v{32 + 2 * w}, v{33 + 2 * w}")
    for w in range(2): e(f"v_permlane32_swap_b32 v{40 + w}, v{42 + w}")
    e(f"buffer_store_dwordx4 v[40:43], v48, {srd(sOUT)}, s{sT2} offen {Opt.outm}")
    if Opt.stamps:
        p.wait_vm(0)
        stamp(p, 7)
        e(f"s_memtime s[{sST+30}:{sST+31}]")
        p.wait_lg(0)
        e(f"s_lshl_b32 s{sT0}, s2, 3"); e(f"s_add_u32 s{sT0}, s{sT0}, s{sWAVE}"); e(f"s_lshl_b32 s{sT0}, s{sT0}, 6")
        e(f"s_add_u32 s{sT0}, s{sT0}, {128 * 1024 * 1024}")
        for i in range(16): e(f"v_mov_b32 v{i}, s{sST + 2 * i}")
        e("v_mov_b32 v16, 0")
        e("s_mov_b64 exec, 1")
        for i in range(4): e(f"buffer_store_dwordx4 v[{4*i}:{4*i+3}], v16, {srd(sWS)}, s{sT0} offen offset:{16*i}")
    e("s_endpgm")

def build():
    p0 = Prog()
    prologue(p0)
    nc = len(Opt.cls)
    for c in range(1, nc):
        p0.e(f"s_cmp_eq_u32 s{sCL}, {c}")
        p0.e(f"s_cbranch_scc1 L_cls{c}")
    Cs = []; st = None
    for c in range(nc):
        Pc = p0.fork()
        if c: Pc.label(f"L_cls{c}")
        sc = St(c, Opt.cls[c])
        phase1(Pc, sc); phase1_post(Pc, sc); att_pre(Pc, sc); att_loop(Pc, sc, range(Opt.jt))
        assert not sc.acts, sc.acts
        assert st is None or st.key() == sc.key(), (st.key(), sc.key())
        st = sc
        Cs.append(Pc)
    for Pc in Cs[:-1]: Pc.e("s_branch L_join")
    J = Cs[0].fork()
    for Pc in Cs[1:]: J = J.merge(Pc)
    J.hist = list(Cs[-1].hist)
    J.label("L_join")
    st.acts = St(0, Opt.att).acts; st.cid = 0
    att_loop(J, st, range(Opt.jt, 16)); att_post(J, st)
    outproj(J); reduce_out(J)
    F = Prog(); fix(F, 0); fix(F, 1)
    F.label("L_end"); F.e("s_endpgm")
    hdr = open("cdna_kernels/" + NAME + ".s.ref").read().split("; Override")[0]
    s = hdr + "; @launch grid=(256,1,1) block=(512,1,1) lds=163840\n" + HEADER
    s += f".globl {KN}\n.p2align 8\n.type {KN},@function\n{KN}:\n"
    s += p0.text() + "".join(Pc.text() for Pc in Cs) + J.text() + F.text()
    s += kernel_desc(KN, 256, 256, 102).replace(".text\n", "")
    print("instrs", p0.nins, [Pc.nins for Pc in Cs], J.nins, "nop states", [Pc.nops for Pc in Cs], J.nops, file=sys.stderr)
    return s

if __name__ == "__main__":
    out = sys.argv[1]
    for a in sys.argv[2:]:
        k, v = a.split("=", 1)
        assert hasattr(Opt, k), k
        setattr(Opt, k, eval(v))
    open(out, "w").write(build())
    assemble(out, out.replace(".s", ".co"), KN)
```
